```python
import torch

def _softmax(x, axis=-1):
    return torch.softmax(x, dim=axis)

def _gelu(x):
    return torch.nn.functional.gelu(x, approximate='tanh')

def _silu(x):
    return torch.nn.functional.silu(x)

def _sigmoid(x):
    return torch.sigmoid(x)

def _layernorm(x, axis=-1, eps=1e-05):
    m = x.mean(dim=axis, keepdim=True)
    v = x.var(dim=axis, keepdim=True, unbiased=False)
    return (x - m) / torch.sqrt(v + eps)

def _scatter_add(tgt, idx, src, axis=0):
    return tgt.clone().index_add_(axis, idx, src)

def _segment_sum(src, seg, n):
    out = torch.zeros((n,) + src.shape[1:], dtype=src.dtype)
    return out.index_add_(0, seg, src)

def _pad(x, pw):
    flat = tuple((v for pair in reversed(pw) for v in pair))
    return torch.nn.functional.pad(x, flat)
kernel_name = 'adaLN_cond__ssm_conv_h3__geglu_ffn__prompt'

def setup_inputs():

    _w = lambda a: (lambda t: t.to(torch.bfloat16) if t.is_floating_point() else t)(torch.as_tensor(a))

    def _A_setup():
        B, S, D = (1, 2048, 512)
        ks = 4
        return {'q': _w((lambda *s: torch.randn(*s, dtype=torch.bfloat16) * 0.05)(B, S, D)), 'k': _w((lambda *s: torch.randn(*s, dtype=torch.bfloat16) * 0.8)(B, S, D)), 'v': _w((lambda *s: torch.randn(*s, dtype=torch.bfloat16) * 0.8)(B, S, D)), 'shift_k': _w((lambda *s: torch.randn(*s, dtype=torch.bfloat16) * 0.8)(D, ks) * 0.5), 'ssm_k': _w((lambda *s: torch.randn(*s, dtype=torch.bfloat16) * 0.8)(D, S) * (1.0 / S ** 0.5)), 'ssm_D': _w((lambda *s: torch.randn(*s, dtype=torch.bfloat16) * 0.8)(D))}
    _A_in = _A_setup()

    def _B_setup():
        B, S, D, F = (1, 2048, 512, 1792)
        return {'x': _w((lambda *s: torch.randn(*s, dtype=torch.bfloat16) * 0.05)(B, S, D)), 'w_gate': _w((lambda *s: torch.randn(*s, dtype=torch.bfloat16) * 0.05)(D, F)), 'w_up': _w((lambda *s: torch.randn(*s, dtype=torch.bfloat16) * 0.05)(D, F)), 'w_down': _w((lambda *s: torch.randn(*s, dtype=torch.bfloat16) * 0.05)(F, D))}
    _B_in = _B_setup()
    return {'A_q': _A_in['q'], 'A_k': _A_in['k'], 'A_v': _A_in['v'], 'A_shift_k': _A_in['shift_k'], 'A_ssm_k': _A_in['ssm_k'], 'A_ssm_D': _A_in['ssm_D'], 'B_x': _B_in['x'], 'B_w_gate': _B_in['w_gate'], 'B_w_up': _B_in['w_up'], 'B_w_down': _B_in['w_down'], 'c': _w((lambda *s: torch.randn(*s, dtype=torch.bfloat16) * 0.1)(1, 512) * 8.0), 'w_mod': _w((lambda *s: torch.randn(*s, dtype=torch.bfloat16) * 0.1)(512, 6 * 512) * 512 ** (-0.5) * 8.0)}

def reference(A_q, A_k, A_v, A_shift_k, A_ssm_k, A_ssm_D, B_x, B_w_gate, B_w_up, B_w_down, c, w_mod):

    def _A_ref(q, k, v, shift_k, ssm_k, ssm_D):
        B, S, D = q.shape
        ks = shift_k.shape[-1]
        k_pad = _pad(k, ((0, 0), (ks - 1, 0), (0, 0)))
        k_shift = torch.zeros_like(k)
        for t in range(ks):
            k_shift = k_shift + k_pad[:, t:t + S, :] * shift_k[:, ks - 1 - t][None, None, :]
        kv = k_shift * v
        L = 2 * S
        kv_pad = _pad(kv, ((0, 0), (0, S), (0, 0)))
        kf_pad = _pad(ssm_k, ((0, 0), (0, S)))
        kv_f = (lambda x, axes=(-2, -1): torch.fft.rfft2(x.float(), dim=axes))(kv_pad[:, None, :, :], axes=(1, 2))
        kf_f = (lambda x, axes=(-2, -1): torch.fft.rfft2(x.float(), dim=axes))(kf_pad[:, None, :], axes=(1, 2))
        kf_f = (lambda x, *d: x.permute(*d))(kf_f, 1, 2, 0)
        y_f = kv_f * kf_f[None, :, :, :]
        y = (lambda x, s, axes=(-2, -1): torch.fft.irfft2(x, s=s, dim=axes).to(torch.bfloat16))(y_f, (1, L), axes=(1, 2))[:, 0, :S, :]
        y = y + kv * ssm_D[None, None, :]
        return q * y

    def _B_ref(x, w_gate, w_up, w_down):
        return _gelu(x @ w_gate) * (x @ w_up) @ w_down
    x = A_q
    mod = (_silu(c) @ w_mod).reshape(c.shape[0], 6, 1, -1)
    sa, ca, ga, sb, cb, gb = (mod[:, 0].clone(), mod[:, 1].clone(), mod[:, 2].clone(), mod[:, 3].clone(), mod[:, 4].clone(), mod[:, 5].clone())
    h = _layernorm(x, axis=-1) * (1 + ca) + sa
    x = x + ga * _A_ref(h, A_k, A_v, A_shift_k, A_ssm_k, A_ssm_D)
    h = _layernorm(x, axis=-1) * (1 + cb) + sb
    x = x + gb * _B_ref(h, B_w_gate, B_w_up, B_w_down)
    return x
```

```python
import re, copy

REG_RE = re.compile(r"(?<![\w.])([vsa])(?:\[(\d+):(\d+)\]|(\d+))(?![\w])")

def regs_of(tok):
    out = set()
    t = tok.strip()
    for m in REG_RE.finditer(t):
        k = m.group(1)
        if m.group(2) is not None:
            for i in range(int(m.group(2)), int(m.group(3)) + 1):
                out.add((k, i))
        else:
            out.add((k, int(m.group(4))))
    if re.search(r"\bvcc(_lo|_hi)?\b", t): out.add(("x", "vcc"))
    if re.search(r"\bexec(_lo|_hi)?\b", t): out.add(("x", "exec"))
    if re.search(r"\bm0\b", t): out.add(("x", "m0"))
    return out

def split_ops(s):
    ops, depth, cur = [], 0, ""
    for ch in s:
        if ch in "[(": depth += 1
        if ch in "])": depth -= 1
        if ch == "," and depth == 0:
            ops.append(cur.strip()); cur = ""
        else:
            cur += ch
    if cur.strip(): ops.append(cur.strip())
    return ops

TRANS = ("v_exp_f32", "v_log_f32", "v_rcp_f32", "v_rsq_f32", "v_sqrt_f32", "v_sin_f32", "v_cos_f32", "v_rcp_iflag_f32")
NO_DST_S = ("s_cmp", "s_waitcnt", "s_barrier", "s_nop", "s_branch", "s_cbranch", "s_setprio", "s_endpgm", "s_sleep", "s_bitcmp")

class Ins:
    __slots__ = ("text", "op", "rd", "wr", "cls", "srcC", "srcAB", "passes", "wide_store", "dpp", "is_label", "lds_dma", "sdata")
    def __init__(self, text):
        self.text = text
        self.is_label = text.endswith(":")
        self.rd, self.wr = set(), set()
        self.cls = "other"
        self.srcC, self.srcAB, self.passes = set(), set(), 0
        self.wide_store, self.dpp, self.lds_dma = False, False, False
        self.sdata = set()
        if self.is_label or text.startswith(".") or text.startswith(";"):
            self.op = ""
            self.cls = "pseudo"
            return
        parts = text.split(None, 1)
        op = self.op = parts[0]
        base = re.sub(r"_(e32|e64|dpp|sdwa)$", "", op)
        rest = parts[1] if len(parts) > 1 else ""
        ops = split_ops(rest)
        R = [regs_of(o.split(" ")[0]) if not o.startswith("abs(") and not o.startswith("-") else regs_of(o) for o in ops]
        allr = lambda lst: set().union(*lst) if lst else set()
        if base.startswith("v_mfma"):
            self.cls = "mfma"
            self.wr = R[0]; self.srcAB = R[1] | R[2]; self.srcC = R[3]; self.rd = self.srcAB | self.srcC
            if "32x32x16" in base or "32x32x8" in base: self.passes = 8
            elif "16x16x32" in base or "16x16x16" in base: self.passes = 4
            else: raise ValueError("unknown mfma " + op)
        elif base.startswith("v_"):
            self.cls = "valu"
            self.dpp = ("quad_perm" in rest or "row_" in rest or "wave_" in rest or op.endswith("_dpp"))
            if base.startswith("v_cmpx"):
                self.wr = R[0] | {("x", "exec")}; self.rd = allr(R[1:])
            elif base.startswith("v_cmp"):
                self.wr = R[0]; self.rd = allr(R[1:])
            elif base in ("v_add_co_u32", "v_sub_co_u32", "v_subrev_co_u32"):
                self.wr = R[0] | R[1]; self.rd = allr(R[2:])
            elif base in ("v_addc_co_u32", "v_subb_co_u32"):
                self.wr = R[0] | R[1]; self.rd = allr(R[2:])
            elif base.startswith("v_permlane") and "swap" in base:
                self.wr = R[0] | R[1]; self.rd = R[0] | R[1]
            elif base == "v_nop":
                pass
            else:
                self.wr = R[0]; self.rd = allr(R[1:])
                if base.startswith(("v_fmac", "v_mac", "v_dot2c", "v_pk_fmac", "v_writelane")) or self.dpp:
                    self.rd |= R[0]
            if base in TRANS: self.cls = "trans"
            if base.startswith("v_dot"): self.cls = "dot"
        elif base.startswith("ds_"):
            self.cls = "ds"
            if base.startswith(("ds_read", "ds_bpermute", "ds_permute", "ds_swizzle")) or "_rtn" in base:
                self.wr = R[0]; self.rd = allr(R[1:])
            else:
                self.rd = allr(R)
        elif base.startswith("buffer_"):
            self.cls = "vmem"
            words = rest.replace(",", " ").split()
            if base.startswith("buffer_load"):
                if "lds" in words:
                    self.lds_dma = True
                    self.rd = allr(R) | {("x", "m0")}
                else:
                    self.wr = R[0]; self.rd = allr(R[1:])
            elif base.startswith("buffer_store"):
                self.rd = allr(R); self.sdata = R[0]
                self.wide_store = base.endswith(("x3", "x4"))
            elif base.startswith("buffer_atomic"):
                self.rd = allr(R)
                if "sc0" in words: self.wr = R[0]
            elif base.startswith(("buffer_inv", "buffer_wbl2")):
                pass
            else:
                raise ValueError(op)
        elif base.startswith("global_"):
            self.cls = "vmem"
            words = rest.replace(",", " ").split()
            if base.startswith("global_load_lds"):
                self.lds_dma = True; self.rd = allr(R) | {("x", "m0")}
            elif base.startswith("global_load"):
                self.wr = R[0]; self.rd = allr(R[1:])
            elif base.startswith("global_store"):
                self.rd = allr(R); self.sdata = R[1]
                self.wide_store = base.endswith(("x3", "x4"))
            elif base.startswith("global_atomic"):
                if "sc0" in words and len(ops) == 4:
                    self.wr = R[0]; self.rd = allr(R[1:])
                else:
                    self.rd = allr(R)
            else:
                raise ValueError(op)
        elif base.startswith(("s_load", "s_buffer_load", "s_memtime", "s_memrealtime")):
            self.cls = "smem"
            self.wr = R[0]; self.rd = allr(R[1:])
        elif base.startswith("s_"):
            self.cls = "salu"
            if base.startswith(NO_DST_S):
                self.rd = allr(R)
            else:
                self.wr = R[0] if R else set(); self.rd = allr(R[1:])
                if "saveexec" in base:
                    self.wr = self.wr | {("x", "exec")}; self.rd |= {("x", "exec")}
                if base.startswith(("s_addk", "s_mulk", "s_cmov", "s_bitset")):
                    self.rd |= R[0]
        else:
            raise ValueError("unknown op: " + text)

    def states(self):
        if self.cls == "pseudo": return 0
        if self.op == "s_nop": return int(self.text.split()[1], 0) + 1
        return 1

def isv(r): return r[0] in ("v", "a")
def iss(r): return r[0] == "s" or r == ("x", "vcc")

def required_gap(p, c):
    need = 0
    pv = p.cls in ("valu", "trans", "dot")
    cv = c.cls in ("valu", "trans", "dot")
    pw_v = {r for r in p.wr if isv(r)}
    pw_s = {r for r in p.wr if iss(r)}
    if pv:
        if c.cls == "mfma" and (pw_v & c.rd): need = max(need, 2)
        if c.cls == "mfma" and ("x", "exec") in p.wr: need = max(need, 4)
        if cv and c.dpp and (pw_v & c.rd): need = max(need, 2)
        if cv and c.dpp and ("x", "exec") in p.wr: need = max(need, 5)
        if c.op.startswith("v_permlane") and (pw_v & c.rd): need = max(need, 2)
        if c.op.startswith(("v_permlane", "v_readlane", "v_readfirstlane", "v_writelane")) and ("x", "exec") in p.wr: need = max(need, 4)
        if c.op.startswith(("v_readlane", "v_readfirstlane")) and (pw_v & c.rd): need = max(need, 1)
        if c.cls == "vmem" and (pw_s & c.rd): need = max(need, 5)
        if cv and (pw_s & c.rd):
            need = max(need, 4 if c.op.startswith(("v_readlane", "v_writelane")) else 2)
        if p.cls == "trans" and cv and c.cls != "trans" and (pw_v & c.rd): need = max(need, 1)
        if p.cls == "trans" and c.cls == "trans" and (pw_v & c.rd): need = max(need, 1)
        if p.cls == "dot" and (pw_v & (c.rd | c.wr)):
            same = c.op == p.op
            need = max(need, 0 if (same and not (pw_v & _dot_ab(c))) else 3)
        if ("op_sel" in p.text or "sdwa" in p.text) and not p.op.startswith("v_pk_") and cv and (pw_v & (c.rd | c.wr)): need = max(need, 1)
    if p.cls == "salu" and ("x", "m0") in p.wr and (c.lds_dma or "addtid" in c.op): need = max(need, 1)
    if p.cls == "vmem" and p.wide_store and (p.sdata & c.wr): need = max(need, 2 if cv else 1)
    if p.cls == "mfma":
        n = p.passes
        D = p.wr
        if c.cls == "mfma":
            if D & c.srcAB: need = max(need, n + 4)
            if D & c.srcC:
                if not (D == c.srcC and c.passes == n): need = max(need, n + 2)
            elif D & c.wr:
                need = max(need, n + 4)
        elif cv:
            if D & (c.rd | c.wr): need = max(need, n + 4)
            if p.srcC & c.wr: need = max(need, n - 1)
        elif c.cls in ("vmem", "ds"):
            if D & (c.rd | c.wr): need = max(need, n + 4)
            if p.srcC & c.wr: need = max(need, n - 1)
    return need

def _dot_ab(c):
    ops = split_ops(c.text.split(None, 1)[1])
    return regs_of(ops[1]) | regs_of(ops[2])

class Asm:
    def __init__(self):
        self.ins = []
        self.vmq = []
        self.lgq = []
        self.seq = 0
        self.nvm = 0
    def snapshot(self): return (list(self.vmq), list(self.lgq))
    def restore(self, st): self.vmq, self.lgq = list(st[0]), list(st[1])
    def raw(self, text):
        self.ins.append(Ins(text))
    def label(self, name): self.raw(name + ":")
    def comment(self, s): self.raw("; " + s)
    def _wait(self, vm=None, lg=None):
        parts = []
        if vm is not None:
            vm = min(vm, 63)
            if len(self.vmq) > vm:
                parts.append(f"vmcnt({vm})"); self.vmq = self.vmq[len(self.vmq) - vm:] if vm else []
        if lg is not None:
            lg = min(lg, 15)
            if any(x[2] for x in self.lgq): lg = 0
            if len(self.lgq) > lg:
                parts.append(f"lgkmcnt({lg})"); self.lgq = self.lgq[len(self.lgq) - lg:] if lg else []
        if parts: self.raw("s_waitcnt " + " ".join(parts))
    def wait_vm_tag(self, tag):
        n = sum(1 for x in self.vmq if x[0] > tag)
        self._wait(vm=n)
    def wait_lg_tag(self, tag):
        n = sum(1 for x in self.lgq if x[0] > tag)
        self._wait(lg=n)
    def wait_all(self, vm=True, lg=True):
        self._wait(vm=0 if vm else None, lg=0 if lg else None)
    def __call__(self, text):
        text = text.strip()
        if ";" in text and not text.startswith(";"): text = text.split(";")[0].strip()
        I = Ins(text)
        touched = I.rd | I.wr
        vm = lg = None
        for idx, (s, d) in enumerate(self.vmq):
            if d & touched: vm = len(self.vmq) - 1 - idx
        for idx, (s, d, sm) in enumerate(self.lgq):
            if d & touched: lg = len(self.lgq) - 1 - idx
        if vm is not None or lg is not None: self._wait(vm, lg)
        self.ins.append(I)
        self.seq += 1
        if I.cls == "vmem":
            self.vmq.append((self.seq, set(I.wr)))
            if len(self.vmq) > 64: self.vmq = self.vmq[-64:]
        elif I.cls == "ds":
            self.lgq.append((self.seq, set(I.wr), False))
        elif I.cls == "smem":
            self.lgq.append((self.seq, set(I.wr), True))
        return self.seq
    def barrier(self):
        self._wait(lg=0)
        self.raw("s_barrier")
    def finish(self):
        out = []
        for I in self.ins:
            if I.cls != "pseudo":
                need = 0; dist = 0
                for P in reversed(out):
                    if dist >= 20: break
                    g = required_gap(P, I) if P.cls != "pseudo" else 0
                    if g - dist > need: need = g - dist
                    dist += P.states()
                while need > 0:
                    k = min(need, 16)
                    out.append(Ins(f"s_nop {k-1}")); need -= k
            out.append(I)
        self.ins = out
        return "\n".join((x.text if x.is_label else "    " + x.text) for x in out)

def vr(a, n=1): return f"v{a}" if n == 1 else f"v[{a}:{a+n-1}]"
def sr(a, n=1): return f"s{a}" if n == 1 else f"s[{a}:{a+n-1}]"
```

```python
import sys
sys.path.insert(0, "tools")
from gasm import Asm, vr, sr

NAME = "adaLN_cond__ssm_conv_h3__geglu_ffn__prompt"
KA = dict(q=0, k=8, v=16, sh=24, h=32, D=40, bx=48, wg=56, wu=64, wd=72, c=80, wm=88, out=96, dbg=104, ws=112)
UT_PITCH = 4224
WS_UT = 0
WS_XX = 0x210000
WS_MOD = WS_XX + 0x400000
WS_X1T = WS_MOD + 0x4000
WS_WP = WS_X1T + 0x200000
WS_CP = WS_WP + 112 * 32768
WS_WDP = WS_CP + 3584 * 64
WS_ACT = WS_WDP + 16 * 112 * 1024
WS_END = WS_ACT + 64 * 112 * 1024
MASKHI = 0xffff0000

def srd(A, s, ptr, off, size, extra=None):
    if off or extra is None:
        if off:
            A(f"s_add_u32 s{s}, s{ptr}, {off:#x}"); A(f"s_addc_u32 s{s+1}, s{ptr+1}, 0")
        else:
            A(f"s_mov_b32 s{s}, s{ptr}"); A(f"s_mov_b32 s{s+1}, s{ptr+1}")
        if extra is not None:
            A(f"s_add_u32 s{s}, s{s}, {extra}"); A(f"s_addc_u32 s{s+1}, s{s+1}, 0")
    else:
        A(f"s_add_u32 s{s}, s{ptr}, {extra}"); A(f"s_addc_u32 s{s+1}, s{ptr+1}, 0")
    A(f"s_mov_b32 s{s+2}, {size if isinstance(size, str) else hex(size)}")
    A(f"s_mov_b32 s{s+3}, 0x20000")

DPP = "row_mask:0xf bank_mask:0xf"

def k1():
    A = Asm()
    A("s_cmp_ge_u32 s2, 256"); A("s_cbranch_scc1 K1_end")
    A("s_load_dwordx4 s[4:7], s[0:1], 0")
    A("s_load_dwordx4 s[8:11], s[0:1], 16")
    A("s_load_dwordx4 s[12:15], s[0:1], 80")
    A("s_load_dwordx2 s[16:17], s[0:1], 112")
    A("s_and_b32 s56, s2, 7")
    A("s_lshr_b32 s57, s2, 3")
    A("s_lshr_b32 s58, s57, 2")
    A("s_lshl_b32 s59, s56, 3")
    A("s_add_u32 s58, s58, s59")
    A("s_and_b32 s59, s57, 3")
    A("s_mul_i32 s60, s56, 24")
    A("s_add_u32 s60, s60, s57")
    A("v_and_b32 v1, 63, v0")
    A("v_lshrrev_b32 v2, 6, v0")
    A("s_lshl_b32 s61, s58, 15")
    A("v_lshrrev_b32 v3, 3, v0"); A("v_lshlrev_b32 v3, 10, v3")
    A("v_and_b32 v4, 7, v0"); A("v_lshl_add_u32 v3, v4, 4, v3")
    A("v_lshrrev_b32 v5, 1, v1"); A("v_lshl_add_u32 v5, v2, 7, v5")
    A("v_mul_u32_u24 v6, 6144, v5"); A("v_and_b32 v7, 1, v0"); A("v_lshl_add_u32 v6, v7, 4, v6")
    A("v_lshlrev_b32 v5, 1, v5")
    A("v_lshrrev_b32 v8, 4, v1")
    A("v_and_b32 v9, 15, v1")
    A("v_lshlrev_b32 v10, 5, v2"); A("v_lshl_add_u32 v10, v9, 1, v10")
    A("s_lshl_b32 s62, s59, 7"); A("v_add_u32 v10, s62, v10")
    A("v_lshlrev_b32 v11, 13, v8"); A("v_lshl_add_u32 v11, v10, 1, v11")
    A("v_add_u32 v11, s61, v11")
    A("v_add_u32 v12, 0xfffff400, v11")
    A("v_lshlrev_b32 v13, 3, v10")
    A("s_mov_b32 s63, 4096")
    A("s_mov_b32 s64, 0xffff0000")
    A("s_mov_b32 s65, 0x3f803f80")
    srd(A, 20, 4, 0, 0x200000)
    for t in range(8):
        A(f"buffer_load_dwordx4 {vr(16+4*t,4)}, v3, s[20:23], s61 offen offset:{128*t}")
    A("s_cmp_lt_u32 s57, 24"); A("s_cselect_b32 s66, 0x300000, 0"); A("s_cselect_b32 s67, 0x3000, 0")
    srd(A, 40, 14, 0, "s66")
    srd(A, 36, 12, 0, 1024)
    A("s_lshl_b32 s68, s60, 5")
    for t in range(4):
        A(f"buffer_load_dwordx4 {vr(48+4*t,4)}, v6, s[40:43], s68 offen")
        if t < 3: A("s_add_u32 s68, s68, 196608")
    for t in range(4):
        A(f"buffer_load_ushort v{64+t}, v5, s[36:39], 0 offen offset:{64*t}")
    srd(A, 24, 6, 0, 0x200000)
    srd(A, 28, 8, 0, 0x200000)
    srd(A, 32, 10, 0, 4096)
    for i in range(3):
        A(f"buffer_load_dword v{68+i}, v12, s[24:27], 0 offen offset:{1024*i}")
    for i in range(8):
        A(f"buffer_load_dword v{71+i}, v11, s[24:27], {'s63' if i >= 4 else '0'} offen offset:{1024*(i%4)}")
    A("buffer_load_dwordx4 v[96:99], v13, s[32:35], 0 offen")
    for i in range(8):
        A(f"buffer_load_dword v{79+i}, v11, s[28:31], {'s63' if i >= 4 else '0'} offen offset:{1024*(i%4)}")
    for i in range(8):
        A(f"buffer_load_dword v{87+i}, v11, s[20:23], {'s63' if i >= 4 else '0'} offen offset:{1024*(i%4)}")
    srd(A, 44, 16, WS_UT, 512 * UT_PITCH)
    srd(A, 48, 16, WS_XX, 0x400000)
    srd(A, 52, 16, WS_MOD, "s67")
    for r in (100, 101, 102, 103): A(f"v_mov_b32 v{r}, 0")
    for i in range(32):
        A(f"v_dot2c_f32_bf16 v{100 + (i & 1)}, s65, v{16+i}")
        A(f"v_dot2c_f32_bf16 v{102 + (i & 1)}, v{16+i}, v{16+i}")
    A("v_add_f32 v100, v100, v101"); A("v_add_f32 v102, v102, v103")
    for m in ("quad_perm:[1,0,3,2]", "quad_perm:[2,3,0,1]", "row_half_mirror"):
        A(f"v_add_f32_dpp v100, v100, v100 {m} {DPP}")
        A(f"v_add_f32_dpp v102, v102, v102 {m} {DPP}")
    A("v_mul_f32 v100, 0x3b000000, v100")
    A("v_mul_f32 v102, 0x3b000000, v102")
    A("v_fma_f32 v102, -v100, v100, v102")
    A("v_max_f32 v102, 0, v102")
    A("v_add_f32 v102, 0x3727c5ac, v102")
    A("v_rsq_f32 v102, v102")
    A("v_lshrrev_b32 v104, 3, v0"); A("v_lshlrev_b32 v104, 3, v104")
    A("v_mul_f32 v103, v100, v102")
    A("v_sub_f32 v103, 0, v103")
    A("ds_write_b64 v104, v[102:103]")
    for t in range(4):
        c = 64 + t
        A(f"v_lshlrev_b32 v{c}, 16, v{c}")
        A(f"v_mul_f32 v105, 0xbfb8aa3b, v{c}")
        A("v_exp_f32 v105, v105")
        A("v_add_f32 v105, 1.0, v105")
        A("v_rcp_f32 v105, v105")
        A(f"v_mul_f32 v{c}, v{c}, v105")
        A(f"v_cvt_pk_bf16_f32 v{c}, v{c}, v{c}")
        A(f"v_and_b32 v{c}, s64, v{c}")
    for t in range(4):
        for j in range(4):
            w = 48 + 4*t + j
            A(f"v_lshlrev_b32 v114, 16, v{w}"); A(f"v_and_b32 v115, s64, v{w}")
            if t == 0:
                A(f"v_mul_f32 v{106+2*j}, v64, v114"); A(f"v_mul_f32 v{107+2*j}, v64, v115")
            else:
                A(f"v_fmac_f32 v{106+2*j}, v{64+t}, v114"); A(f"v_fmac_f32 v{107+2*j}, v{64+t}, v115")
    for m in ("quad_perm:[2,3,0,1]", "row_ror:4", "row_ror:8"):
        for j in range(8):
            A(f"v_add_f32_dpp v{106+j}, v{106+j}, v{106+j} {m} {DPP}")
    A("v_lshrrev_b32 v114, 4, v0"); A("v_lshlrev_b32 v114, 6, v114"); A("v_lshl_add_u32 v114, v7, 5, v114")
    A("s_mov_b32 exec_lo, 0x00030003"); A("s_mov_b32 exec_hi, 0x00030003")
    A("ds_write_b128 v114, v[106:109] offset:256")
    A("ds_write_b128 v114, v[110:113] offset:272")
    A("s_mov_b64 exec, -1")
    A("v_lshlrev_b32 v16, 16, v96"); A("v_lshlrev_b32 v17, 16, v98")
    A("v_and_b32 v18, s64, v96");    A("v_and_b32 v19, s64, v98")
    A("v_lshlrev_b32 v20, 16, v97"); A("v_lshlrev_b32 v21, 16, v99")
    A("v_and_b32 v22, s64, v97");    A("v_and_b32 v23, s64, v99")
    KF = 24
    for i in range(11):
        A(f"v_lshlrev_b32 v{KF+2*i}, 16, v{68+i}"); A(f"v_and_b32 v{KF+2*i+1}, s64, v{68+i}")
    UF = 48
    for i in range(8):
        u = UF + 2*i
        A(f"v_pk_mul_f32 {vr(u,2)}, {vr(KF+2*(i+3),2)}, v[16:17]")
        for j in (1, 2, 3):
            A(f"v_pk_fma_f32 {vr(u,2)}, {vr(KF+2*(i+3-j),2)}, {vr(16+2*j,2)}, {vr(u,2)}")
        A(f"v_lshlrev_b32 v46, 16, v{79+i}"); A(f"v_and_b32 v47, s64, v{79+i}")
        A(f"v_pk_mul_f32 {vr(u,2)}, {vr(u,2)}, v[46:47]")
    for ch in range(2):
        for m in range(4):
            A(f"v_cvt_pk_bf16_f32 v{68+4*ch+m}, v{UF+2*(7-2*m)+ch}, v{UF+2*(6-2*m)+ch}")
    A(f"v_mul_u32_u24 v14, {UT_PITCH}, v10")
    A("v_lshlrev_b32 v15, 4, v8")
    A("v_sub_u32 v15, v14, v15")
    A("s_lshl_b32 s69, s58, 6"); A("s_sub_u32 s69, 4080, s69")
    A("v_add_u32 v15, s69, v15")
    A(f"s_mov_b32 s70, {UT_PITCH}")
    A("buffer_store_dwordx4 v[68:71], v15, s[44:47], 0 offen")
    A("buffer_store_dwordx4 v[72:75], v15, s[44:47], s70 offen")
    A("s_cmp_lg_u32 s58, 0"); A("s_cbranch_scc1 K1_nopad")
    for r in range(4): A(f"v_mov_b32 v{76+r}, 0")
    A("v_lshl_add_u32 v14, v8, 4, v14")
    A("v_add_u32 v14, 4096, v14")
    A.raw("buffer_store_dwordx4 v[76:79], v14, s[44:47], 0 offen")
    A.raw("buffer_store_dwordx4 v[76:79], v14, s[44:47], s70 offen")
    A.label("K1_nopad")
    XF = 24
    for i in range(8):
        A(f"v_lshlrev_b32 v{XF+2*i}, 16, v{87+i}"); A(f"v_and_b32 v{XF+2*i+1}, s64, v{87+i}")
    A("s_mov_b32 s71, 0x05040100"); A("s_mov_b32 s72, 0x07060302")
    OUT = 100
    for m in range(4):
        A(f"v_perm_b32 v{OUT+2*m}, v{87+2*m+1}, v{87+2*m}, s71")
        A(f"v_perm_b32 v{OUT+8+2*m}, v{87+2*m+1}, v{87+2*m}, s72")
    A("v_lshlrev_b32 v14, 6, v8")
    A.barrier()
    for t in range(4):
        A(f"ds_read_b128 {vr(48+4*t,4)}, v14 offset:{16*t}")
    for i in range(8):
        st = 48 + 2*i
        A(f"v_pk_fma_f32 {vr(XF+2*i,2)}, {vr(XF+2*i,2)}, {vr(st,2)}, {vr(st,2)} op_sel:[0,0,1] op_sel_hi:[1,0,1]")
    for m in range(4):
        A(f"v_cvt_pk_bf16_f32 v{OUT+2*m+1}, v{XF+4*m}, v{XF+4*m+2}")
        A(f"v_cvt_pk_bf16_f32 v{OUT+8+2*m+1}, v{XF+4*m+1}, v{XF+4*m+3}")
    A("v_lshlrev_b32 v14, 13, v10"); A("v_lshl_add_u32 v14, v8, 5, v14")
    A("s_lshl_b32 s69, s58, 7"); A("s_add_u32 s73, s69, 8192")
    A("buffer_store_dwordx4 v[100:103], v14, s[48:51], s69 offen")
    A("buffer_store_dwordx4 v[104:107], v14, s[48:51], s69 offen offset:16")
    A("buffer_store_dwordx4 v[108:111], v14, s[48:51], s73 offen")
    A("buffer_store_dwordx4 v[112:115], v14, s[48:51], s73 offen offset:16")
    A("v_readfirstlane_b32 s74, v2")
    A("s_cmp_lg_u32 s74, 0"); A("s_cbranch_scc1 K1_end")
    A("v_lshlrev_b32 v14, 2, v9")
    for p in range(16):
        A(f"ds_read_b32 v{16+p}, v14 offset:{256+64*p}")
    A("s_lshr_b32 s75, s60, 5")
    A("s_cmp_eq_u32 s75, 1"); A("s_cselect_b32 s76, 1.0, 0")
    A("s_cmp_eq_u32 s75, 4"); A("s_cselect_b32 s76, 1.0, s76")
    for st in (8, 4, 2, 1):
        for p in range(st):
            A(f"v_add_f32 v{16+p}, v{16+p}, v{16+p+st}")
    A("v_cvt_pk_bf16_f32 v16, v16, v16"); A("v_and_b32 v16, s64, v16")
    A("v_add_f32 v16, s76, v16")
    A("v_cvt_pk_bf16_f32 v16, v16, v16"); A("v_and_b32 v16, s64, v16")
    A("s_lshl_b32 s75, s60, 6")
    A("s_mov_b64 exec, 0xffff")
    A("buffer_store_dword v16, v14, s[52:55], s75 offen")
    A.label("K1_end")
    A.raw("s_endpgm")
    return A.finish(), 120, 1280

CH_SZ = 25856
H_SZ = 16640
U1_OFF = H_SZ
U0_OFF = H_SZ + 4544 + 32
EX_OFF = 2 * CH_SZ
CACC_OFF = EX_OFF + 16384
K2_LDS = CACC_OFF + 1024

def k2():
    A = Asm()
    A("s_cmp_ge_u32 s2, 256"); A("s_cbranch_scc1 K2_end")
    A("s_load_dwordx4 s[4:7], s[0:1], 32")
    A("s_load_dwordx4 s[8:11], s[0:1], 56")
    A("s_load_dwordx2 s[12:13], s[0:1], 72")
    A("s_load_dwordx2 s[14:15], s[0:1], 112")
    A("v_lshrrev_b32 v2, 6, v0")
    A("v_and_b32 v1, 63, v0")
    A("v_readfirstlane_b32 s3, v2")
    A("s_mov_b32 s64, 0xffff0000")
    A("s_cmp_ge_u32 s3, 4"); A("s_cbranch_scc1 K2_prep")
    st0 = A.snapshot()
    A("s_setprio 1")
    A("s_lshr_b32 s16, s3, 1")
    A("s_and_b32 s17, s3, 1")
    A("s_lshl_b32 s18, s2, 1"); A("s_add_u32 s18, s18, s16")
    A(f"s_mul_i32 s19, s16, {CH_SZ}")
    A("s_lshl_b32 s40, s17, 1")
    A("v_lshl_add_u32 v3, v1, 4, s40")
    A(f"s_mul_i32 s41, s17, {U0_OFF - U1_OFF}"); A("s_add_u32 s41, s41, s19"); A(f"s_add_u32 s41, s41, {U1_OFF}")
    A("v_lshrrev_b32 v4, 2, v1"); A("v_lshlrev_b32 v4, 4, v4"); A("v_and_b32 v5, 3, v1"); A("v_lshl_add_u32 v4, v5, 2, v4")
    A("s_lshl_b32 s42, s17, 11"); A("s_add_u32 s42, s42, 4")
    A("v_add_u32 v4, s42, v4")
    A("v_lshrrev_b32 v6, 4, v1"); A("v_lshlrev_b32 v6, 2, v6"); A("v_bfe_u32 v7, v1, 2, 2"); A("v_add3_u32 v6, v6, v7, v5")
    A("v_lshlrev_b32 v6, 2, v6"); A("v_add_u32 v6, -60, v6")
    A(f"s_mul_i32 s43, s18, {UT_PITCH}")
    A("s_lshl_b32 s44, s18, 12")
    A("s_mov_b32 m0, s41")
    srd(A, 24, 14, WS_UT, 4160, "s43")
    for i in range(4):
        A(f"buffer_load_dwordx4 v3, s[24:27], 0 offen offset:{1024*i} lds")
    srd(A, 20, 4, 0, 4096, "s44")
    A("s_lshl_b32 s45, s17, 13"); A("s_add_u32 s45, s45, s19"); A("s_add_u32 s45, s45, 256")
    for i in range(8):
        A(f"s_add_u32 m0, s45, {768*i}")
        tag = A(f"buffer_load_dwordx4 v4, s[20:23], 0 offen offset:{256*i} lds")
    A("s_mov_b32 m0, s19")
    tag = A("buffer_load_dword v6, s[20:23], 0 offen lds")
    A("s_lshl_b32 s46, s18, 2")
    A(f"s_add_u32 s48, s14, {WS_MOD:#x}"); A("s_addc_u32 s49, s15, 0")
    A("s_add_u32 s48, s48, s46"); A("s_addc_u32 s49, s49, 0")
    A("s_load_dword s50, s[48:49], 0"); A("s_load_dword s51, s[48:49], 2048"); A("s_load_dword s52, s[48:49], 4096")
    A("s_lshl_b32 s46, s2, 2")
    A("s_load_dword s53, s[6:7], s46")
    A("v_lshrrev_b32 v8, 4, v1")
    A("v_and_b32 v9, 15, v1")
    A("v_lshlrev_b32 v10, 8, v8"); A("v_lshl_add_u32 v10, v9, 3, v10")
    A("s_lshl_b32 s46, s18, 13"); A("s_lshl_b32 s47, s17, 12")
    srd(A, 28, 14, WS_XX, 8192, "s46")
    XXR = 200
    for jj in range(4):
        for rr in range(2):
            A(f"buffer_load_dwordx2 {vr(XXR+4*jj+2*rr,2)}, v10, s[28:31], s47 offen offset:{1024*jj+128*rr}")
    srd(A, 32, 14, WS_X1T, 4096, "s44")
    for r in range(4): A(f"v_mov_b32 v{16+r}, 0")
    A("v_lshl_add_u32 v11, v1, 4, s41")
    A("s_mov_b32 exec_lo, 0x0fffffff"); A("s_mov_b32 exec_hi, 0")
    A("ds_write_b128 v11, v[16:19] offset:4096")
    A("s_mov_b64 exec, -1")
    A("v_lshrrev_b32 v12, 2, v9"); A("v_add_u32 v12, v12, v8"); A("v_lshlrev_b32 v12, 6, v12"); A("v_lshl_add_u32 v12, v5, 4, v12")
    A("s_lshl_b32 s46, s17, 10"); A("s_add_u32 s46, s46, s19"); A("v_add_u32 v12, s46, v12")
    A("v_lshrrev_b32 v13, 1, v9"); A("v_lshlrev_b32 v13, 2, v13"); A("v_sub_u32 v13, v8, v13"); A("v_lshlrev_b32 v13, 4, v13")
    A("v_and_b32 v14, 1, v1"); A(f"v_mul_u32_u24 v14, {U0_OFF - U1_OFF}, v14"); A("v_sub_u32 v13, v13, v14")
    A("s_lshl_b32 s46, s17, 8"); A("s_add_u32 s46, s46, s19"); A(f"s_add_u32 s46, s46, {U0_OFF + 28*16}")
    A("v_add_u32 v13, s46, v13")
    A.wait_vm_tag(tag)
    A.barrier()
    ACC = 16
    FR = [48, 112]
    def rd(setb, mi, idx):
        j = idx // 2
        if idx % 2 == 0:
            A(f"ds_read_b128 {vr(setb+4*j,4)}, v13 offset:{3584 - 512*j + 64*mi}")
        else:
            A(f"ds_read_b128 {vr(setb+32+4*j,4)}, v12 offset:{2048*j + 256*mi}")
    pairs = sorted([(q, jp) for q in range(8) for jp in range(8) if q + jp <= 7], key=lambda t: (max(t), t))
    for idx in range(16): rd(FR[0], 0, idx)
    seen = set()
    for mi in range(4):
        sb = FR[mi % 2]; nb = FR[(mi + 1) % 2]
        nxt = 0
        for n, (q, jp) in enumerate(pairs):
            t = q + jp
            c = vr(ACC+4*t, 4) if t in seen else "0"
            seen.add(t)
            A(f"v_mfma_f32_16x16x32_bf16 {vr(ACC+4*t,4)}, {vr(sb+4*jp,4)}, {vr(sb+32+4*q,4)}, {c}")
            if mi < 3 and n >= 2 and n % 2 == 0 and nxt < 16:
                rd(nb, mi + 1, nxt); nxt += 1
        assert mi == 3 or nxt == 16
    A("s_lshl_b32 s46, s3, 12"); A(f"s_add_u32 s46, s46, {EX_OFF}")
    A("v_lshl_add_u32 v3, v1, 4, s46")
    A("s_xor_b32 s46, s3, 1"); A("s_lshl_b32 s46, s46, 12"); A(f"s_add_u32 s46, s46, {EX_OFF}")
    A("v_lshl_add_u32 v4, v1, 4, s46")
    A("v_lshlrev_b32 v5, 7, v8"); A("v_lshl_add_u32 v5, v9, 2, v5")
    A("s_lshl_b32 s47, s17, 11")
    A("s_sub_u32 s46, s19, s47"); A(f"s_add_u32 s46, s46, {U1_OFF + 4092 - 1600}")
    A("v_sub_u32 v6, s46, v5")
    for jj in range(4):
        for rr in range(2):
            A(f"ds_read_b32 v{48+2*jj+rr}, v6 offset:{1600 - 512*jj - 64*rr}")
    A.raw("s_nop 7")
    A("s_cmp_eq_u32 s17, 0"); A("s_cbranch_scc0 K2_x1")
    for t in range(4): A.raw(f"ds_write_b128 v3, {vr(ACC+16+4*t,4)} offset:{1024*t}")
    A.raw("s_branch K2_x2")
    A.label("K2_x1")
    for t in range(4): A.raw(f"ds_write_b128 v3, {vr(ACC+4*t,4)} offset:{1024*t}")
    for r in range(16): A.raw(f"v_mov_b32 v{ACC+r}, v{ACC+16+r}")
    A.label("K2_x2")
    A("s_lshl_b32 s46, s53, 16"); A("s_and_b32 s53, s53, s64")
    A("s_cmp_eq_u32 s16, 0"); A("s_cselect_b32 s53, s46, s53")
    A("v_mov_b32 v60, s51"); A("v_mov_b32 v61, s50"); A("v_mov_b32 v62, s53"); A("v_mov_b32 v63, s52")
    A.raw("s_waitcnt lgkmcnt(0)"); A.lgq = []
    A.raw("s_barrier")
    for t in range(4): A(f"ds_read_b128 {vr(64+4*t,4)}, v4 offset:{1024*t}")
    for jj in range(4):
        for rr in range(2):
            a = ACC + 4*jj + 2*rr; p = 64 + 4*jj + 2*rr
            xx = XXR + 4*jj + 2*rr; u = 48 + 2*jj + rr
            A(f"v_lshlrev_b32 v80, 16, v{xx}"); A(f"v_and_b32 v81, s64, v{xx}")
            A(f"v_lshlrev_b32 v82, 16, v{xx+1}"); A(f"v_and_b32 v83, s64, v{xx+1}")
            A(f"v_and_b32 v84, s64, v{u}"); A(f"v_lshlrev_b32 v85, 16, v{u}")
            A(f"v_pk_fma_f32 v[82:83], v[82:83], v[60:61], v[60:61] op_sel:[0,0,1] op_sel_hi:[1,0,1]")
            A(f"v_pk_add_f32 {vr(a,2)}, {vr(a,2)}, {vr(p,2)}")
            A(f"v_pk_fma_f32 v[84:85], v[84:85], v[62:63], {vr(a,2)} op_sel:[0,0,0] op_sel_hi:[1,0,1]")
            A("v_pk_mul_f32 v[82:83], v[82:83], v[84:85]")
            A("v_pk_fma_f32 v[80:81], v[82:83], v[62:63], v[80:81] op_sel:[0,1,0] op_sel_hi:[1,1,1]")
            A(f"v_cvt_pk_bf16_f32 v{86+2*jj+rr}, v80, v81")
            A(f"buffer_store_dword v{86+2*jj+rr}, v5, s[32:35], s47 offen offset:{512*jj+64*rr}")
    A.raw("s_endpgm")
    A.label("K2_prep")
    A.restore(st0)
    A("s_cmp_ge_u32 s2, 224"); A("s_cbranch_scc1 K2_end")
    A("s_sub_u32 s16, s3, 4")
    A("s_mul_hi_u32 s17, s2, 0x24924925"); A("s_lshr_b32 s17, s17, 2")
    A("s_mul_i32 s18, s17, 28"); A("s_sub_u32 s18, s2, s18")
    A("s_lshl_b32 s19, s17, 2"); A("s_add_u32 s19, s19, s16")
    A("s_mul_i32 s40, s19, 57344"); A("s_lshl_b32 s41, s18, 7"); A("s_add_u32 s40, s40, s41"); A("s_add_u32 s40, s40, 3584")
    A("v_and_b32 v3, 31, v1"); A("v_lshl_add_u32 v4, v3, 2, s40")
    A("v_cmp_gt_u32 vcc, 32, v1")
    A("v_mov_b32 v6, s10"); A("v_mov_b32 v7, s8"); A("v_cndmask_b32 v6, v6, v7, vcc")
    A("v_mov_b32 v7, s11"); A("v_mov_b32 v8, s9"); A("v_cndmask_b32 v7, v7, v8, vcc")
    A("v_add_co_u32 v6, vcc, v6, v4"); A("v_addc_co_u32 v7, vcc, 0, v7, vcc")
    WR = 16
    for i in range(16):
        A(f"global_load_dword v{WR+i}, v[6:7], off offset:{(i%3-1)*3584}")
        if i % 3 == 2:
            A("v_add_co_u32 v6, vcc, 10752, v6"); A("v_addc_co_u32 v7, vcc, 0, v7, vcc")
    srd(A, 20, 12, 0, 1792 * 1024)
    A("s_lshl_b32 s42, s16, 8"); A("v_lshl_add_u32 v5, v1, 2, s42")
    A("s_lshl_b32 s42, s2, 13"); A("s_add_u32 s43, s42, 4096")
    DR = 32
    for i in range(8):
        A(f"buffer_load_dword v{DR+i}, v5, s[20:23], {'s43' if i >= 4 else 's42'} offen offset:{1024*(i%4)}")
    A("s_lshl_b32 s44, s19, 6")
    A(f"s_add_u32 s46, s14, {WS_MOD:#x}"); A("s_addc_u32 s47, s15, 0")
    A("s_add_u32 s46, s46, s44"); A("s_addc_u32 s47, s47, 0")
    A("s_load_dwordx16 s[68:83], s[46:47], 8192")
    A("s_load_dwordx16 s[84:99], s[46:47], 6144")
    for r in range(4): A(f"v_mov_b32 v{40+r}, 0")
    A(f"v_lshlrev_b32 v9, 4, v1"); A(f"v_add_u32 v9, {CACC_OFF:#x}, v9")
    A(f"ds_write_b128 v9, v[40:43]")
    srd(A, 24, 14, WS_WP, 112 * 32768)
    srd(A, 28, 14, WS_WDP, 16 * 112 * 1024)
    srd(A, 32, 14, WS_CP, 3584 * 64)
    A("v_and_b32 v10, 3, v1"); A("v_lshlrev_b32 v10, 3, v10"); A("v_and_b32 v11, 4, v1"); A("v_add_u32 v10, v10, v11")
    A("v_lshrrev_b32 v11, 5, v1"); A("v_lshl_add_u32 v10, v11, 1, v10")
    A("v_lshrrev_b32 v11, 3, v3")
    A("v_lshlrev_b32 v12, 15, v11"); A("v_lshl_add_u32 v12, v10, 4, v12")
    A("v_lshl_add_u32 v13, v11, 5, v10"); A("v_lshlrev_b32 v13, 3, v13"); A(f"v_add_u32 v13, {CACC_OFF:#x}, v13")
    A("s_lshl_b32 s40, s18, 17"); A("s_lshl_b32 s41, s19, 10"); A("s_add_u32 s40, s40, s41")
    A.barrier()
    for r in range(44, 50): A(f"v_mov_b32 v{r}, 0")
    for hf in range(2):
        P0, P1 = 64 + 8*hf, 68 + 8*hf
        for m in range(4):
            for e in range(2):
                i = 8*hf + 2*m + e
                w = 50 + 2*e
                A(f"v_lshlrev_b32 v{w}, 16, v{WR+i}"); A(f"v_and_b32 v{w+1}, s64, v{WR+i}")
                sel = i & 1
                A(f"v_pk_fma_f32 v[44:45], {vr(w,2)}, {sr(84+(i&~1),2)}, v[44:45] op_sel:[0,{sel},0] op_sel_hi:[1,{sel},1]")
                A(f"v_pk_mul_f32 {vr(w,2)}, {vr(w,2)}, {sr(68+(i&~1),2)} op_sel:[0,{sel}] op_sel_hi:[1,{sel}]")
            A(f"v_cvt_pk_bf16_f32 v{P0+m}, v50, v52")
            A(f"v_cvt_pk_bf16_f32 v{P1+m}, v51, v53")
            A(f"v_lshlrev_b32 v54, 16, v{P0+m}"); A(f"v_and_b32 v55, s64, v{P0+m}")
            A(f"v_lshlrev_b32 v56, 16, v{P1+m}"); A(f"v_and_b32 v57, s64, v{P1+m}")
            A("v_pk_add_f32 v[46:47], v[46:47], v[54:55]")
            A("v_pk_add_f32 v[48:49], v[48:49], v[56:57]")
        A(f"buffer_store_dwordx4 {vr(P0,4)}, v12, s[24:27], s40 offen offset:{512*hf}")
        A(f"buffer_store_dwordx4 {vr(P1,4)}, v12, s[24:27], s40 offen offset:{512*hf+16}")
    A("v_add_f32 v46, v46, v47"); A("v_add_f32 v48, v48, v49")
    A(f"ds_add_f32 v13, v46"); A(f"ds_add_f32 v13, v44 offset:4")
    A(f"ds_add_f32 v13, v48 offset:8"); A(f"ds_add_f32 v13, v45 offset:12")
    A("s_mov_b32 s44, 0x05040100"); A("s_mov_b32 s45, 0x07060302")
    for m in range(4):
        A(f"v_perm_b32 v{80+m}, v{DR+2*m+1}, v{DR+2*m}, s44")
        A(f"v_perm_b32 v{84+m}, v{DR+2*m+1}, v{DR+2*m}, s45")
    A("v_and_b32 v10, 1, v1"); A("v_lshlrev_b32 v10, 1, v10"); A("v_bfe_u32 v11, v1, 1, 2"); A("v_lshl_add_u32 v10, v11, 3, v10")
    A("v_bfe_u32 v11, v1, 3, 1"); A("v_lshl_add_u32 v10, v11, 2, v10"); A("v_lshlrev_b32 v10, 4, v10")
    A("v_lshrrev_b32 v11, 4, v1"); A("v_mul_u32_u24 v11, 114688, v11"); A("v_add_u32 v10, v10, v11")
    A("s_mul_i32 s44, s16, 458752"); A("s_lshl_b32 s45, s2, 9"); A("s_add_u32 s44, s44, s45")
    A("buffer_store_dwordx4 v[80:83], v10, s[28:31], s44 offen")
    A("buffer_store_dwordx4 v[84:87], v10, s[28:31], s44 offen offset:16")
    A.barrier()
    A("s_cmp_lg_u32 s16, 0"); A("s_cbranch_scc1 K2_end")
    A(f"ds_read_b128 v[40:43], v9")
    A("v_lshlrev_b32 v10, 7, v1")
    A("s_lshl_b32 s44, s18, 13"); A("s_lshl_b32 s45, s17, 3"); A("s_add_u32 s44, s44, s45")
    A("buffer_store_dwordx2 v[40:41], v10, s[32:35], s44 offen")
    A("buffer_store_dwordx2 v[42:43], v10, s[32:35], s44 offen offset:64")
    A.label("K2_end")
    A.raw("s_endpgm")
    return A.finish(), 216, K2_LDS

K3_ST = 131072
K3_BF = K3_ST + 1024
K3_CN = K3_BF + 2048
K3_LDS = K3_CN + 2048 + 64

def k3():
    A = Asm()
    A("s_cmp_ge_u32 s2, 256"); A("s_cbranch_scc1 K3_end")
    A("s_load_dwordx2 s[14:15], s[0:1], 112")
    A("v_lshrrev_b32 v2, 6, v0"); A("v_and_b32 v1, 63, v0")
    A("v_readfirstlane_b32 s3, v2")
    A("s_and_b32 s16, s2, 7"); A("s_lshr_b32 s17, s2, 3")
    A("s_and_b32 s18, s16, 1"); A("s_lshl_b32 s18, s18, 3"); A("s_and_b32 s19, s17, 7"); A("s_add_u32 s18, s18, s19")
    A("s_lshr_b32 s19, s16, 1"); A("s_lshl_b32 s19, s19, 2"); A("s_lshr_b32 s40, s17, 3"); A("s_add_u32 s19, s19, s40")
    A("s_mul_i32 s40, s19, 7"); A("s_add_u32 s40, s40, s3")
    A("s_mov_b32 s64, 0xffff0000")
    A("v_lshrrev_b32 v3, 4, v1"); A("v_and_b32 v4, 15, v1")
    A("v_lshlrev_b32 v5, 2, v3"); A("v_xor_b32 v5, v5, v4"); A("v_lshlrev_b32 v5, 4, v5"); A("v_lshl_add_u32 v5, v3, 12, v5")
    A("v_lshlrev_b32 v6, 4, v1")
    A("s_lshl_b32 s41, s18, 8")
    A("s_lshl_b32 s42, s40, 15")
    A("s_lshl_b32 s44, s3, 15")
    A("s_lshl_b32 s45, s3, 11")
    srd(A, 20, 14, WS_X1T, 0x200000 - 15 * 256, "s41")
    A("s_cmp_eq_u32 s3, 7"); A("s_cbranch_scc1 K3_help")
    st0 = A.snapshot()
    def xdma(ch):
        tg = None
        for i in range(2):
            A(f"s_add_u32 m0, s45, {ch*16384 + i*1024}")
            A(f"s_add_u32 s46, s44, {ch*262144 + i*16384}")
            tg = A("buffer_load_dwordx4 v5, s[20:23], s46 offen lds")
        return tg
    srd(A, 24, 14, WS_WP, 32768, "s42")
    W = 128
    tags = []
    A("s_mov_b32 s47, 0")
    for ch in range(8):
        tags.append(xdma(ch))
        for i in range(4):
            kk = 4*ch + i
            A(f"buffer_load_dwordx4 {vr(W+4*kk,4)}, v6, s[24:27], s47 offen offset:{1024*i}")
        if ch < 7: A("s_add_u32 s47, s47, 4096")
    A("s_lshl_b32 s42, s40, 11")
    srd(A, 28, 14, WS_CP, 2048, "s42")
    A("v_and_b32 v7, 31, v1"); A("v_lshrrev_b32 v8, 5, v1")
    A("v_lshlrev_b32 v9, 6, v7"); A("v_lshl_add_u32 v9, v8, 5, v9")
    A("buffer_load_dwordx4 v[112:115], v9, s[28:31], 0 offen")
    A("buffer_load_dwordx4 v[116:119], v9, s[28:31], 0 offen offset:16")
    A("v_bfe_u32 v10, v1, 2, 2")
    A("v_lshl_add_u32 v11, v8, 3, v10"); A("v_lshlrev_b32 v11, 8, v11")
    A("v_and_b32 v12, 16, v1"); A("v_lshl_add_u32 v11, v12, 1, v11")
    A("v_and_b32 v12, 3, v1"); A("v_lshl_add_u32 v11, v12, 3, v11")
    XB = 12
    for j in range(4):
        A(f"v_xor_b32 v{XB+j}, {j}, v10"); A(f"v_lshl_add_u32 v{XB+j}, v{XB+j}, 6, v11")
    ACC = 16
    XF = [80, 96]
    def rdx(kk, j):
        f = XF[kk % 2] + 4*j
        off = (kk % 16) * 4096
        A(f"ds_read_b64_tr_b16 {vr(f,2)}, v{XB+j} offset:{off}")
        A(f"ds_read_b64_tr_b16 {vr(f+2,2)}, v{XB+j} offset:{off+1024}")
    A.wait_vm_tag(tags[0]); A.barrier()
    for j in range(4): rdx(0, j)
    for kk in range(32):
        nk = kk + 1
        if nk < 32 and nk % 4 == 0:
            A.wait_vm_tag(tags[nk // 4]); A.raw("s_barrier")
        for j in range(4):
            c = vr(ACC+16*j, 16) if kk else "0"
            A(f"v_mfma_f32_32x32x16_bf16 {vr(ACC+16*j,16)}, {vr(W+4*kk,4)}, {vr(XF[kk%2]+4*j,4)}, {c}")
            if nk < 32:
                if nk == 16: A(f"v_add_u32 v{XB+j}, 0x10000, v{XB+j}")
                rdx(nk, j)
    A("v_pk_add_f32 v[112:113], v[112:113], v[114:115]"); A("v_pk_add_f32 v[116:117], v[116:117], v[118:119]")
    A("v_pk_add_f32 v[112:113], v[112:113], v[116:117]")
    A("v_cvt_pk_bf16_f32 v114, v112, v113")
    A("v_lshlrev_b32 v116, 16, v114"); A("v_and_b32 v117, s64, v114")
    A("v_pk_add_f32 v[112:113], v[112:113], v[116:117] neg_lo:[0,1] neg_hi:[0,1]")
    A("v_cvt_pk_bf16_f32 v115, v112, v113")
    A("s_mov_b32 s48, 0x01000100"); A("s_mov_b32 s49, 0x07060100"); A("s_mov_b32 s50, 0x07060302")
    A("v_perm_b32 v120, v114, v114, s48")
    A("v_perm_b32 v121, v114, v115, s49")
    A("v_perm_b32 v122, v115, v114, s50")
    A("v_mov_b32 v123, 0")
    A("v_lshlrev_b32 v9, 4, v7")
    A("s_mul_i32 s42, s18, 4*112*1024"); A("s_lshl_b32 s43, s40, 10"); A("s_add_u32 s42, s42, s43")
    srd(A, 32, 14, WS_ACT, 64 * 112 * 1024)
    A.barrier()
    A(f"v_add_u32 v9, {K3_BF:#x}, v9")
    for j in range(4):
        A(f"ds_read_b128 {vr(80+4*j,4)}, v9 offset:{512*j}")
        A(f"ds_read_b128 {vr(96+4*j,4)}, v9 offset:{2048+512*j}")
    for j in range(4):
        A(f"v_mfma_f32_32x32x16_bf16 {vr(ACC+16*j,16)}, v[120:123], {vr(80+4*j,4)}, {vr(ACC+16*j,16)}")
    for j in range(4):
        cn = 96 + 4*j
        O = 128 + 4*j
        for q in range(4):
            g = ACC + 16*j + 4*q; u = g + 2
            T = 144 + 4*(q % 2)
            A(f"v_pk_mul_f32 {vr(T,2)}, {vr(g,2)}, {vr(g,2)}")
            A(f"v_pk_mul_f32 {vr(u,2)}, {vr(u,2)}, {vr(g,2)}")
            A(f"v_pk_fma_f32 {vr(T,2)}, {vr(T,2)}, {vr(cn,2)}, {vr(cn,2)} op_sel:[0,1,0] op_sel_hi:[1,1,0]")
            A(f"v_pk_mul_f32 {vr(T,2)}, {vr(T,2)}, {vr(g,2)}")
            A(f"v_exp_f32 v{T}, v{T}"); A(f"v_exp_f32 v{T+1}, v{T+1}")
            A(f"v_pk_fma_f32 {vr(T,2)}, {vr(T,2)}, {vr(cn+2,2)}, {vr(cn+2,2)} op_sel:[0,0,0] op_sel_hi:[1,0,0]")
            A(f"v_rcp_f32 v{T}, v{T}"); A(f"v_rcp_f32 v{T+1}, v{T+1}")
            A(f"v_pk_mul_f32 {vr(u,2)}, {vr(u,2)}, {vr(T,2)}")
            A(f"v_cvt_pk_bf16_f32 v{O+q}, v{u}, v{u+1}")
        A(f"buffer_store_dwordx4 {vr(O,4)}, v6, s[32:35], s42 offen")
        if j < 3: A(f"s_add_u32 s42, s42, {112*1024}")
    A.raw("s_endpgm")
    A.label("K3_help")
    A.restore(st0)
    A("s_setprio 2")
    tags = [xdma(ch) for ch in range(8)]
    A("v_bfe_u32 v10, v1, 2, 2")
    A("v_lshl_add_u32 v11, v3, 3, v10"); A("v_lshlrev_b32 v11, 8, v11")
    A("v_and_b32 v12, 3, v1"); A("v_lshl_add_u32 v11, v12, 3, v11")
    for j in range(4):
        A(f"v_xor_b32 v{XB+j}, {j}, v10"); A(f"v_lshl_add_u32 v{XB+j}, v{XB+j}, 6, v11")
    for r in range(4): A(f"v_mov_b32 v{16+r}, 0x3f803f80")
    GA, SA = 32, 64
    HF = [96, 128]
    def rdh(k32, jb):
        f = HF[k32 % 2] + 4*jb
        off = (k32 % 8) * 8192 + 32 * (jb % 2)
        A(f"ds_read_b64_tr_b16 {vr(f,2)}, v{XB+jb//2} offset:{off}")
        A(f"ds_read_b64_tr_b16 {vr(f+2,2)}, v{XB+jb//2} offset:{off+1024}")
    A.wait_vm_tag(tags[0]); A.barrier()
    for jb in range(8): rdh(0, jb)
    for k32 in range(16):
        nk = k32 + 1
        if nk < 16 and nk % 2 == 0:
            A.wait_vm_tag(tags[nk // 2]); A.raw("s_barrier")
        if nk == 8:
            for j in range(4): A(f"v_add_u32 v{XB+j}, 0x10000, v{XB+j}")
        for jb in range(8):
            f = vr(HF[k32 % 2] + 4*jb, 4)
            A(f"v_mfma_f32_16x16x32_bf16 {vr(GA+4*jb,4)}, {f}, {f}, {vr(GA+4*jb,4) if k32 else '0'}")
            A(f"v_mfma_f32_16x16x32_bf16 {vr(SA+4*jb,4)}, v[16:19], {f}, {vr(SA+4*jb,4) if k32 else '0'}")
            if nk < 16: rdh(nk, jb)
    A("v_and_b32 v20, 3, v1")
    A("v_cmp_eq_u32 s[52:53], 1, v20"); A("v_cmp_eq_u32 s[54:55], 2, v20"); A("v_cmp_eq_u32 s[56:57], 3, v20")
    A("v_bfe_u32 v21, v1, 2, 2"); A("v_cmp_eq_u32 s[58:59], v21, v3")
    A(f"v_lshlrev_b32 v22, 3, v4"); A(f"v_add_u32 v22, {K3_ST:#x}, v22")
    for jb in range(8):
        g = GA + 4*jb; s = SA + 4*jb
        A(f"v_cndmask_b32 v{s+1}, v{g}, v{g+1}, s[52:53]")
        A(f"v_cndmask_b32 v{s+1}, v{s+1}, v{g+2}, s[54:55]")
        A(f"v_cndmask_b32 v{s+1}, v{s+1}, v{g+3}, s[56:57]")
    A("s_mov_b64 exec, s[58:59]")
    for jb in range(8):
        A(f"ds_write_b64 v22, {vr(SA+4*jb,2)} offset:{128*jb}")
    A("s_mov_b64 exec, -1")
    A(f"v_lshlrev_b32 v22, 3, v1"); A(f"v_add_u32 v22, {K3_ST:#x}, v22")
    A.wait_all(vm=False)
    A("ds_read_b64 v[24:25], v22"); A("ds_read_b64 v[26:27], v22 offset:512")
    A(f"v_add_u32 v23, {K3_BF:#x}, v6")
    A("s_mov_b32 s48, 0x05040100"); A("s_mov_b32 s49, 0x07060100"); A("s_mov_b32 s50, 0x07060302")
    for hlf in range(2):
        a = 24 + 2*hlf
        B = 32 + 16*hlf
        A(f"v_mul_f32 v{a}, 0xbb000000, v{a}")
        A(f"v_mul_f32 v{a+1}, 0x3b000000, v{a+1}")
        A(f"v_fma_f32 v{a+1}, -v{a}, v{a}, v{a+1}")
        A(f"v_max_f32 v{a+1}, 0, v{a+1}")
        A(f"v_add_f32 v{B+6}, 0x3727c5ac, v{a+1}")
        A(f"v_rsq_f32 v{B+8}, v{B+6}")
        A(f"v_sqrt_f32 v{a+1}, v{B+6}")
        A(f"v_mul_f32 v{B+4}, 0xc0135761, v{B+8}")
        A(f"v_mul_f32 v{B+9}, v{B+8}, v{B+8}")
        A(f"v_mul_f32 v{B+9}, v{B+9}, v{B+8}")
        A(f"v_mul_f32 v{B+5}, 0xbdd2d3e8, v{B+9}")
        A(f"v_mov_b32 v{B+7}, 0")
        A(f"v_cvt_pk_bf16_f32 v{B+10}, v{a}, v{a+1}")
        A(f"v_lshlrev_b32 v{B+12}, 16, v{B+10}"); A(f"v_and_b32 v{B+13}, s64, v{B+10}")
        A(f"v_pk_add_f32 {vr(a,2)}, {vr(a,2)}, {vr(B+12,2)} neg_lo:[0,1] neg_hi:[0,1]")
        A(f"v_cvt_pk_bf16_f32 v{B+11}, v{a}, v{a+1}")
        A(f"v_perm_b32 v{B}, v{B+11}, v{B+10}, s48")
        A(f"v_mov_b32 v{B+1}, v{B+10}")
        A(f"v_perm_b32 v{B+2}, v{B+10}, v{B+11}, s50")
        A(f"v_mov_b32 v{B+3}, 0")
        A(f"ds_write_b128 v23, {vr(B,4)} offset:{1024*hlf}")
        A(f"ds_write_b128 v23, {vr(B+4,4)} offset:{2048+1024*hlf}")
    A.barrier()
    A.label("K3_end")
    A.raw("s_endpgm")
    return A.finish(), 256, K3_LDS

K4_LDS = 4 * 3 * 4096

def k4():
    A = Asm()
    A("s_cmp_ge_u32 s2, 256"); A("s_cbranch_scc1 K4_end")
    A("s_load_dwordx2 s[14:15], s[0:1], 112")
    A("s_load_dwordx2 s[12:13], s[0:1], 96")
    A("v_lshrrev_b32 v2, 6, v0"); A("v_and_b32 v1, 63, v0")
    A("v_readfirstlane_b32 s3, v2")
    A("s_and_b32 s16, s2, 7"); A("s_lshr_b32 s17, s2, 3")
    A("s_lshl_b32 s18, s16, 2"); A("s_and_b32 s19, s17, 3"); A("s_add_u32 s18, s18, s19")
    A("s_lshr_b32 s19, s17, 2")
    A("s_mov_b32 s64, 0xffff0000")
    A("v_lshlrev_b32 v6, 4, v1")
    A("s_mul_i32 s40, s3, 28*1024")
    A("s_mul_i32 s41, s18, 2*112*1024"); A("s_add_u32 s41, s41, s40")
    A("s_mul_i32 s42, s19, 2*112*1024"); A("s_add_u32 s42, s42, s40")
    A(f"v_add_u32 v7, {112*1024}, v6")
    srd(A, 20, 14, WS_ACT, 112*1024 + 28*1024, "s41")
    srd(A, 24, 14, WS_WDP, 112*1024 + 28*1024, "s42")
    RING = 8
    FB = 128
    def ld(kk):
        f = FB + 16 * (kk % RING)
        so = f"s{44 + kk // 4}" if kk >= 4 else "0"
        off = 1024 * (kk % 4)
        A(f"buffer_load_dwordx4 {vr(f,4)}, v6, s[24:27], {so} offen offset:{off}")
        A(f"buffer_load_dwordx4 {vr(f+8,4)}, v6, s[20:23], {so} offen offset:{off}")
        A(f"buffer_load_dwordx4 {vr(f+4,4)}, v7, s[24:27], {so} offen offset:{off}")
        A(f"buffer_load_dwordx4 {vr(f+12,4)}, v7, s[20:23], {so} offen offset:{off}")
    for i in range(1, 7): A(f"s_mov_b32 s{44+i}, {4096*i}")
    for kk in range(RING): ld(kk)
    A("s_lshr_b32 s52, s3, 1"); A("s_and_b32 s53, s3, 1")
    A("s_lshl_b32 s54, s19, 1"); A("s_add_u32 s54, s54, s52"); A("s_lshl_b32 s54, s54, 5")
    A("s_lshl_b32 s55, s18, 1"); A("s_add_u32 s55, s55, s53"); A("s_lshl_b32 s55, s55, 5")
    A("v_and_b32 v8, 31, v1"); A("v_lshrrev_b32 v9, 5, v1")
    A("v_lshlrev_b32 v10, 16, v9"); A("v_lshl_add_u32 v10, v8, 1, v10")
    A("s_lshl_b32 s56, s54, 12"); A("s_lshl_b32 s57, s55, 1"); A("s_add_u32 s56, s56, s57")
    srd(A, 28, 14, WS_X1T, 0x200000)
    XR = 80
    for r in range(16):
        A(f"buffer_load_ushort v{XR+r}, v10, s[28:31], s56 offen")
        if r < 15: A("s_add_u32 s56, s56, 4096")
    A("v_lshlrev_b32 v11, 6, v9")
    A("s_lshl_b32 s56, s54, 2")
    srd(A, 32, 14, WS_MOD + 2560*4, 2048)
    GB = 96
    for r in range(4):
        A(f"buffer_load_dwordx4 {vr(GB+4*r,4)}, v11, s[32:35], s56 offen offset:{16*r}")
    ACC = 16
    for kk in range(28):
        f = FB + 16 * (kk % RING)
        for (di, sj) in ((0, 0), (1, 0), (0, 1), (1, 1)):
            a = ACC + 16 * (2*di + sj)
            A(f"v_mfma_f32_32x32x16_bf16 {vr(a,16)}, {vr(f+4*di,4)}, {vr(f+8+4*sj,4)}, {vr(a,16) if kk else '0'}")
        if kk + RING < 28: ld(kk + RING)
    A("v_lshlrev_b32 v12, 10, v8"); A("v_lshl_add_u32 v12, v9, 5, v12")
    A("s_lshl_b32 s56, s55, 10"); A("s_lshl_b32 s57, s54, 1"); A("s_add_u32 s56, s56, s57")
    srd(A, 36, 12, 0, 0x200000)
    A("s_mul_i32 s58, s3, 12288"); A("v_add_u32 v13, s58, v6")
    A.raw("s_nop 7")
    for w in range(4):
        if w < 3:
            A(f"s_cmp_lg_u32 s3, {w}"); A(f"s_cbranch_scc1 K4_s{w+1}")
        for dst in range(4):
            if dst == w: continue
            slot = (w - dst - 1) % 4
            for q in range(4):
                A.raw(f"ds_write_b128 v6, {vr(ACC+16*dst+4*q,4)} offset:{dst*12288 + slot*4096 + q*1024}")
        if w > 0:
            for r in range(16): A.raw(f"v_mov_b32 v{ACC+r}, v{ACC+16*w+r}")
        if w < 3:
            A.raw("s_branch K4_sd")
            A.label(f"K4_s{w+1}")
    A.label("K4_sd")
    A.raw("s_waitcnt lgkmcnt(0)")
    A.raw("s_barrier")
    for sl in range(3):
        for q in range(4):
            A(f"ds_read_b128 {vr(128+16*sl+4*q,4)}, v13 offset:{sl*4096+q*1024}")
    for r in range(16): A(f"v_lshlrev_b32 v{XR+r}, 16, v{XR+r}")
    for sl in range(3):
        for p in range(8):
            A(f"v_pk_add_f32 {vr(ACC+2*p,2)}, {vr(ACC+2*p,2)}, {vr(128+16*sl+2*p,2)}")
    for p in range(8):
        A(f"v_pk_fma_f32 {vr(ACC+2*p,2)}, {vr(ACC+2*p,2)}, {vr(GB+2*p,2)}, {vr(XR+2*p,2)}")
        A(f"v_cvt_pk_bf16_f32 v{32+p}, v{ACC+2*p}, v{ACC+2*p+1}")
        if p % 4 == 3:
            A(f"buffer_store_dwordx4 {vr(32+p-3,4)}, v12, s[36:39], s56 offen offset:{16*(p//4)}")
    A.label("K4_end")
    A.raw("s_endpgm")
    return A.finish(), 256, K4_LDS

def build(path, extra_launches=0):
    ref = open("cdna_kernels/%s.s.ref" % NAME).read()
    head = [l for l in ref.splitlines() if l.startswith(";") and "@launch" not in l and "Override" not in l and "grid=ceil" not in l]
    ks = [("k1_kernel", k1, 256), ("k2_kernel", k2, 512), ("k3_kernel", k3, 512), ("k4_kernel", k4, 256)]
    out = list(head)
    bodies, kds = [], []
    for nm, fn, blk in ks:
        body, vg, lds = fn()
        out.append(f"; @launch kernel={nm} grid=(256,1,1) block=({blk},1,1) lds={lds}")
        bodies.append(f".text\n.globl {nm}\n.p2align 8\n.type {nm},@function\n{nm}:\n{body}\n")
        acc = (vg + 3) // 4 * 4
        kds.append(f""".section .rodata,"a"
.p2align 6
.amdhsa_kernel {nm}
  .amdhsa_next_free_vgpr {vg}
  .amdhsa_next_free_sgpr 102
  .amdhsa_accum_offset {acc}
  .amdhsa_group_segment_fixed_size 0
  .amdhsa_kernarg_size 120
  .amdhsa_user_sgpr_count 2
  .amdhsa_user_sgpr_kernarg_segment_ptr 1
  .amdhsa_system_sgpr_workgroup_id_x 1
  .amdhsa_float_denorm_mode_32 3
.end_amdhsa_kernel
""")
    if extra_launches:
        for i in range(extra_launches):
            out.append("; @launch kernel=nop_kernel grid=(256,1,1) block=(256,1,1) lds=0")
        bodies.append(".text\n.globl nop_kernel\n.p2align 8\n.type nop_kernel,@function\nnop_kernel:\n    s_endpgm\n")
        kds.append(kds[0].replace("k1_kernel", "nop_kernel"))
    out.append('.amdgcn_target "amdgcn-amd-amdhsa--gfx950"')
    open(path, "w").write("\n".join(out) + "\n" + "".join(bodies) + "".join(kds))

if __name__ == "__main__":
    p = sys.argv[1] if len(sys.argv) > 1 else "cdna_kernels/%s.s" % NAME
    build(p, int(sys.argv[2]) if len(sys.argv) > 2 else 0)
    print("written", p, "ws end", hex(WS_END))

def check_ws(wsb, R, rep, bf, torch, np):
    g = lambda off, n, dt=np.uint16: wsb[off:off + n].view(dt)
    mod = torch.from_numpy(g(WS_MOD, 12288, np.float32).copy()); rep("mod", mod, R["mod1"])
    ut = bf(g(WS_UT, 512 * UT_PITCH)).reshape(512, UT_PITCH // 2)
    rep("ut", ut[:, :2048].flip(1).T, R["u"]); print("ut pad", ut[:, 2048:2080].abs().max().item())
    xx = bf(g(WS_XX, 0x400000)).reshape(512, 1024, 2, 2)
    rep("xx.x", xx[:, :, 0, :].reshape(512, 2048).T, R["x"]); rep("xx.xn", xx[:, :, 1, :].reshape(512, 2048).T, R["xn"])
    x1t = bf(g(WS_X1T, 0x200000)).reshape(512, 2048); rep("x1", x1t.T, R["x1"])
    wp = bf(g(WS_WP, 112 * 32768)).reshape(112, 32, 2, 32, 8)
    rho = torch.arange(32); q = rho // 8; h = (rho // 4) % 2; mm = rho % 4
    fl = 8 * h + 2 * q + (mm % 2); mt = mm // 2
    cb1 = R["mod1"][2048:2560]; sb = R["mod1"][1536:2048]
    W2 = torch.stack([R["wg"], R["wu"]])
    Wsel = W2[mt[None, :], :, (16 * torch.arange(112)[:, None] + fl[None, :])]
    wexp = (Wsel * cb1).bfloat16().float()
    rep("wp", wp.permute(0, 3, 1, 2, 4).reshape(112, 32, 512), wexp)
    cp = torch.from_numpy(g(WS_CP, 3584 * 64, np.float32).copy()).reshape(112, 32, 8, 2).sum(2)
    rep("c1", cp[..., 0], wexp.sum(-1)); rep("c2", cp[..., 1], (Wsel * sb).sum(-1))
    wdp = bf(g(WS_WDP, 16 * 112 * 1024)).reshape(16, 112, 2, 32, 8)
    dl = 16 * h + 4 * q + mm
    wdexp = R["wd"][:, (32 * torch.arange(16)[:, None] + dl[None, :])]
    rep("wdp", wdp.permute(1, 2, 4, 0, 3).reshape(1792, 16, 32), wdexp)
    act = bf(g(WS_ACT, 64 * 112 * 1024)).reshape(64, 112, 2, 32, 8)
    rep("act", act.permute(0, 3, 1, 2, 4).reshape(2048, 1792), R["act"])
```

```python
import re, copy

REG_RE = re.compile(r"(?<![\w.])([vsa])(?:\[(\d+):(\d+)\]|(\d+))(?![\w])")

def regs_of(tok):
    out = set()
    t = tok.strip()
    for m in REG_RE.finditer(t):
        k = m.group(1)
        if m.group(2) is not None:
            for i in range(int(m.group(2)), int(m.group(3)) + 1):
                out.add((k, i))
        else:
            out.add((k, int(m.group(4))))
    if re.search(r"\bvcc(_lo|_hi)?\b", t): out.add(("x", "vcc"))
    if re.search(r"\bexec(_lo|_hi)?\b", t): out.add(("x", "exec"))
    if re.search(r"\bm0\b", t): out.add(("x", "m0"))
    return out

def split_ops(s):
    ops, depth, cur = [], 0, ""
    for ch in s:
        if ch in "[(": depth += 1
        if ch in "])": depth -= 1
        if ch == "," and depth == 0:
            ops.append(cur.strip()); cur = ""
        else:
            cur += ch
    if cur.strip(): ops.append(cur.strip())
    return ops

TRANS = ("v_exp_f32", "v_log_f32", "v_rcp_f32", "v_rsq_f32", "v_sqrt_f32", "v_sin_f32", "v_cos_f32", "v_rcp_iflag_f32")
NO_DST_S = ("s_cmp", "s_waitcnt", "s_barrier", "s_nop", "s_branch", "s_cbranch", "s_setprio", "s_endpgm", "s_sleep", "s_bitcmp")

class Ins:
    __slots__ = ("text", "op", "rd", "wr", "cls", "srcC", "srcAB", "passes", "wide_store", "dpp", "is_label", "lds_dma", "sdata")
    def __init__(self, text):
        self.text = text
        self.is_label = text.endswith(":")
        self.rd, self.wr = set(), set()
        self.cls = "other"
        self.srcC, self.srcAB, self.passes = set(), set(), 0
        self.wide_store, self.dpp, self.lds_dma = False, False, False
        self.sdata = set()
        if self.is_label or text.startswith(".") or text.startswith(";"):
            self.op = ""
            self.cls = "pseudo"
            return
        parts = text.split(None, 1)
        op = self.op = parts[0]
        base = re.sub(r"_(e32|e64|dpp|sdwa)$", "", op)
        rest = parts[1] if len(parts) > 1 else ""
        ops = split_ops(rest)
        R = [regs_of(o.split(" ")[0]) if not o.startswith("abs(") and not o.startswith("-") else regs_of(o) for o in ops]
        allr = lambda lst: set().union(*lst) if lst else set()
        if base.startswith("v_mfma"):
            self.cls = "mfma"
            self.wr = R[0]; self.srcAB = R[1] | R[2]; self.srcC = R[3]; self.rd = self.srcAB | self.srcC
            if "32x32x16" in base or "32x32x8" in base: self.passes = 8
            elif "16x16x32" in base or "16x16x16" in base: self.passes = 4
            elif "4x4x4" in base: self.passes = 2
            else: raise ValueError("unknown mfma " + op)
        elif base.startswith("v_"):
            self.cls = "valu"
            self.dpp = ("quad_perm" in rest or "row_" in rest or "wave_" in rest or op.endswith("_dpp"))
            if base.startswith("v_cmpx"):
                self.wr = R[0] | {("x", "exec")}; self.rd = allr(R[1:])
            elif base.startswith("v_cmp"):
                self.wr = R[0]; self.rd = allr(R[1:])
            elif base in ("v_add_co_u32", "v_sub_co_u32", "v_subrev_co_u32"):
                self.wr = R[0] | R[1]; self.rd = allr(R[2:])
            elif base in ("v_addc_co_u32", "v_subb_co_u32"):
                self.wr = R[0] | R[1]; self.rd = allr(R[2:])
            elif base.startswith("v_permlane") and "swap" in base:
                self.wr = R[0] | R[1]; self.rd = R[0] | R[1]
            elif base == "v_nop":
                pass
            else:
                self.wr = R[0]; self.rd = allr(R[1:])
                if base.startswith(("v_fmac", "v_mac", "v_dot2c", "v_pk_fmac", "v_writelane")) or self.dpp:
                    self.rd |= R[0]
            if base in TRANS: self.cls = "trans"
            if base.startswith("v_dot"): self.cls = "dot"
        elif base.startswith("ds_"):
            self.cls = "ds"
            if base.startswith(("ds_read", "ds_bpermute", "ds_permute", "ds_swizzle")) or "_rtn" in base:
                self.wr = R[0]; self.rd = allr(R[1:])
            else:
                self.rd = allr(R)
        elif base.startswith("buffer_"):
            self.cls = "vmem"
            words = rest.replace(",", " ").split()
            if base.startswith("buffer_load"):
                if "lds" in words:
                    self.lds_dma = True
                    self.rd = allr(R) | {("x", "m0")}
                else:
                    self.wr = R[0]; self.rd = allr(R[1:])
            elif base.startswith("buffer_store"):
                self.rd = allr(R); self.sdata = R[0]
                self.wide_store = base.endswith(("x3", "x4"))
            elif base.startswith("buffer_atomic"):
                self.rd = allr(R)
                if "sc0" in words: self.wr = R[0]
            elif base.startswith(("buffer_inv", "buffer_wbl2")):
                pass
            else:
                raise ValueError(op)
        elif base.startswith("global_"):
            self.cls = "vmem"
            words = rest.replace(",", " ").split()
            if base.startswith("global_load_lds"):
                self.lds_dma = True; self.rd = allr(R) | {("x", "m0")}
            elif base.startswith("global_load"):
                self.wr = R[0]; self.rd = allr(R[1:])
            elif base.startswith("global_store"):
                self.rd = allr(R); self.sdata = R[1]
                self.wide_store = base.endswith(("x3", "x4"))
            elif base.startswith("global_atomic"):
                if "sc0" in words and len(ops) == 4:
                    self.wr = R[0]; self.rd = allr(R[1:])
                else:
                    self.rd = allr(R)
            else:
                raise ValueError(op)
        elif base.startswith(("s_load", "s_buffer_load", "s_memtime", "s_memrealtime")):
            self.cls = "smem"
            self.wr = R[0]; self.rd = allr(R[1:])
        elif base.startswith("s_"):
            self.cls = "salu"
            if base.startswith(NO_DST_S):
                self.rd = allr(R)
            else:
                self.wr = R[0] if R else set(); self.rd = allr(R[1:])
                if "saveexec" in base:
                    self.wr = self.wr | {("x", "exec")}; self.rd |= {("x", "exec")}
                if base.startswith(("s_addk", "s_mulk", "s_cmov", "s_bitset")):
                    self.rd |= R[0]
        else:
            raise ValueError("unknown op: " + text)

    def states(self):
        if self.cls == "pseudo": return 0
        if self.op == "s_nop": return int(self.text.split()[1], 0) + 1
        return 1

def isv(r): return r[0] in ("v", "a")
def iss(r): return r[0] == "s" or r == ("x", "vcc")

def required_gap(p, c):
    need = 0
    pv = p.cls in ("valu", "trans", "dot")
    cv = c.cls in ("valu", "trans", "dot")
    pw_v = {r for r in p.wr if isv(r)}
    pw_s = {r for r in p.wr if iss(r)}
    if pv:
        if c.cls == "mfma" and (pw_v & c.rd): need = max(need, 2)
        if c.cls == "mfma" and ("x", "exec") in p.wr: need = max(need, 4)
        if cv and c.dpp and (pw_v & c.rd): need = max(need, 2)
        if cv and c.dpp and ("x", "exec") in p.wr: need = max(need, 5)
        if c.op.startswith("v_permlane") and (pw_v & c.rd): need = max(need, 2)
        if c.op.startswith(("v_permlane", "v_readlane", "v_readfirstlane", "v_writelane")) and ("x", "exec") in p.wr: need = max(need, 4)
        if c.op.startswith(("v_readlane", "v_readfirstlane")) and (pw_v & c.rd): need = max(need, 1)
        if c.cls == "vmem" and (pw_s & c.rd): need = max(need, 5)
        if cv and (pw_s & c.rd):
            need = max(need, 4 if c.op.startswith(("v_readlane", "v_writelane")) else 2)
        if p.cls == "trans" and cv and c.cls != "trans" and (pw_v & c.rd): need = max(need, 1)
        if p.cls == "trans" and c.cls == "trans" and (pw_v & c.rd): need = max(need, 1)
        if p.cls == "dot" and (pw_v & (c.rd | c.wr)):
            same = c.op == p.op
            need = max(need, 0 if (same and not (pw_v & _dot_ab(c))) else 3)
        if ("op_sel" in p.text or "sdwa" in p.text) and not p.op.startswith("v_pk_") and cv and (pw_v & (c.rd | c.wr)): need = max(need, 1)
    if p.cls == "salu" and ("x", "m0") in p.wr and (c.lds_dma or "addtid" in c.op): need = max(need, 1)
    if p.cls == "vmem" and p.wide_store and (p.sdata & c.wr): need = max(need, 2 if cv else 1)
    if p.cls == "mfma":
        n = p.passes
        D = p.wr
        if c.cls == "mfma":
            if D & c.srcAB: need = max(need, n + 4)
            if D & c.srcC:
                if not (D == c.srcC and c.passes == n): need = max(need, n + 2)
                elif n == 2: need = max(need, 2)
            elif D & c.wr:
                need = max(need, n + 4)
        elif cv:
            if D & (c.rd | c.wr): need = max(need, n + 4)
            if p.srcC & c.wr: need = max(need, n - 1)
        elif c.cls in ("vmem", "ds"):
            if D & (c.rd | c.wr): need = max(need, n + 4)
            if p.srcC & c.wr: need = max(need, n - 1)
    return need

def _dot_ab(c):
    ops = split_ops(c.text.split(None, 1)[1])
    return regs_of(ops[1]) | regs_of(ops[2])

class Asm:
    def __init__(self):
        self.ins = []
        self.vmq = []
        self.lgq = []
        self.seq = 0
        self.nvm = 0
    def snapshot(self): return (list(self.vmq), list(self.lgq))
    def restore(self, st): self.vmq, self.lgq = list(st[0]), list(st[1])
    def raw(self, text):
        self.ins.append(Ins(text))
    def label(self, name): self.raw(name + ":")
    def comment(self, s): self.raw("; " + s)
    def _wait(self, vm=None, lg=None):
        parts = []
        if vm is not None:
            vm = min(vm, 63)
            if len(self.vmq) > vm:
                parts.append(f"vmcnt({vm})"); self.vmq = self.vmq[len(self.vmq) - vm:] if vm else []
        if lg is not None:
            lg = min(lg, 15)
            if any(x[2] for x in self.lgq): lg = 0
            if len(self.lgq) > lg:
                parts.append(f"lgkmcnt({lg})"); self.lgq = self.lgq[len(self.lgq) - lg:] if lg else []
        if parts: self.raw("s_waitcnt " + " ".join(parts))
    def mark_vm(self, regs):
        self.seq += 1
        self.vmq.append((self.seq, {("v", r) for r in regs}))
        return self.seq
    def wait_vm_tag(self, tag):
        n = sum(1 for x in self.vmq if x[0] > tag)
        self._wait(vm=n)
    def wait_lg_tag(self, tag):
        n = sum(1 for x in self.lgq if x[0] > tag)
        self._wait(lg=n)
    def wait_all(self, vm=True, lg=True):
        self._wait(vm=0 if vm else None, lg=0 if lg else None)
    def __call__(self, text):
        text = text.strip()
        if ";" in text and not text.startswith(";"): text = text.split(";")[0].strip()
        I = Ins(text)
        touched = I.rd | I.wr
        vm = lg = None
        for idx, (s, d) in enumerate(self.vmq):
            if d & touched: vm = len(self.vmq) - 1 - idx
        for idx, (s, d, sm) in enumerate(self.lgq):
            if d & touched: lg = len(self.lgq) - 1 - idx
        if vm is not None or lg is not None: self._wait(vm, lg)
        self.ins.append(I)
        self.seq += 1
        if I.cls == "vmem":
            self.vmq.append((self.seq, set(I.wr)))
            if len(self.vmq) > 64: self.vmq = self.vmq[-64:]
        elif I.cls == "ds":
            self.lgq.append((self.seq, set(I.wr), False))
        elif I.cls == "smem":
            self.lgq.append((self.seq, set(I.wr), True))
        return self.seq
    stamps_on = False
    clock_ids = (0, 2, 3, 7)
    def stamp(self, i, vreg):
        if not Asm.stamps_on: return
        self.raw("s_memrealtime s[100:101]")
        self.raw("s_waitcnt lgkmcnt(0)"); self.lgq = []
        self.raw(f"v_writelane_b32 v{vreg}, s100, {i}")
        if i in Asm.clock_ids:
            self.raw("s_memtime s[100:101]")
            self.raw("s_waitcnt lgkmcnt(0)")
            self.raw(f"v_writelane_b32 v{vreg}, s100, {32 + i}")
    def stamp_flush(self, vreg, tmp, wsptr, kidx, wave_s, off=0x8000000):
        if not Asm.stamps_on: return
        self.raw("s_mov_b64 exec, -1")
        self.raw(f"s_lshl_b32 s100, s2, 3"); self.raw(f"s_add_u32 s100, s100, {wave_s}"); self.raw("s_lshl_b32 s100, s100, 8")
        self.raw(f"s_add_u32 s100, s100, {off + kidx * 256 * 8 * 256:#x}")
        self.raw(f"v_mbcnt_lo_u32_b32 v{tmp}, -1, 0"); self.raw(f"v_mbcnt_hi_u32_b32 v{tmp}, -1, v{tmp}")
        self.raw(f"v_lshl_add_u32 v{tmp}, v{tmp}, 2, s100")
        self.raw(f"global_store_dword v{tmp}, v{vreg}, s[{wsptr}:{wsptr+1}]")
    def barrier(self):
        self._wait(lg=0)
        self.raw("s_barrier")
    def finish(self):
        out = []
        for I in self.ins:
            if I.cls != "pseudo":
                need = 0; dist = 0
                for P in reversed(out):
                    if dist >= 20: break
                    g = required_gap(P, I) if P.cls != "pseudo" else 0
                    if g - dist > need: need = g - dist
                    dist += P.states()
                while need > 0:
                    k = min(need, 16)
                    out.append(Ins(f"s_nop {k-1}")); need -= k
            out.append(I)
        self.ins = out
        return "\n".join((x.text if x.is_label else "    " + x.text) for x in out)

def vr(a, n=1): return f"v{a}" if n == 1 else f"v[{a}:{a+n-1}]"
def sr(a, n=1): return f"s{a}" if n == 1 else f"s[{a}:{a+n-1}]"
```

```python
import sys
sys.path.insert(0, "tools")
from gasm import Asm, vr, sr

NAME = "adaLN_cond__ssm_conv_h3__geglu_ffn__prompt"
UT_PITCH = 4224
WS_UT = 0
WS_XT = 0x210000
WS_ST1 = WS_XT + 0x200000
WS_MODP = WS_ST1 + 0x4000
WS_X1B = WS_MODP + 0xC000
WS_WP = WS_X1B + 0x200000
WS_CP = WS_WP + 112 * 32768
WS_WDP = WS_CP + 256 * 1792
WS_ACT = WS_WDP + 8 * 229376
WS_SYNC = WS_ACT + 128 * 57344
SY_1A = WS_SYNC
SY_1B = SY_1A + 64 * 128
SY_1P = SY_1B + 128 * 128
SY_2 = SY_1P + 64 * 128
SY_3 = SY_2 + 128 * 128
WS_END = SY_3 + 256 * 128

CH_SZ = 25856; H_SZ = 16640; U1_OFF = H_SZ; U0_OFF = H_SZ + 4544 + 32
EX_OFF = 2 * CH_SZ
RES_OFF = 131072
MISC = RES_OFF + 16384
M_GB, M_BF, M_CN, M_CACC, M_MODL = 256, 512, 2560, 4608, 6656
LDS_SIZE = MISC + 10752
C_P1A, C_P1B, C_MOD, F_S1A, F_S1B, C_FILL, C_EX, C_P, F_S1P, C_S2, F_ST, C_ACT, F_S3 = 0, 4, 8, 12, 16, 20, 28, 36, 40, 44, 48, 52, 68
SPIN_MAX = 100000
DPP = "row_mask:0xf bank_mask:0xf"
R0, R1, R2, R3, R4 = 40, 44, 48, 52, 56
P_Q, P_K, P_V, P_SH, P_H, P_D, P_WG, P_WU, P_WD, P_C, P_WM, P_OUT, P_DBG, P_WS = 16, 18, 20, 22, 24, 26, 30, 32, 34, 36, 38, 12, 14, 4
ST = 2

STAMP_NAMES = {0: "start", 1: "init barrier", 2: "A: UT stored / B: mod done", 3: "A: S1A arrived / B: S1B arrived", 4: "S1A seen", 5: "A: u landed / B: S1B seen",
  6: "A: fill sync / B: W' stored", 7: "conv mfma done", 8: "exchange", 9: "x1 stored", 10: "S2 arrived", 11: "S1P seen", 12: "main: W' issued / help: S2 seen", 13: "B0",
  14: "M0 / F0", 15: "M1 / F1", 16: "M2 / F2", 17: "E3 done / F3", 18: "act3 arrived / S3(0-2) seen", 19: "act0-2 issued", 20: "p0 barrier", 21: "p2 barrier", 22: "S3(3) seen", 23: "p3 barrier", 24: "done", 25: "drained"}
_lab = [0]
def lab(p):
    _lab[0] += 1
    return f"L{p}_{_lab[0]}"

def srd(A, s, ptr, off, size, extra=None):
    if off:
        A(f"s_add_u32 s{s}, s{ptr}, {off:#x}"); A(f"s_addc_u32 s{s+1}, s{ptr+1}, 0")
        if extra is not None:
            A(f"s_add_u32 s{s}, s{s}, {extra}"); A(f"s_addc_u32 s{s+1}, s{s+1}, 0")
    elif extra is not None:
        A(f"s_add_u32 s{s}, s{ptr}, {extra}"); A(f"s_addc_u32 s{s+1}, s{ptr+1}, 0")
    else:
        A(f"s_mov_b32 s{s}, s{ptr}"); A(f"s_mov_b32 s{s+1}, s{ptr+1}")
    A(f"s_mov_b32 s{s+2}, {size if isinstance(size, str) else hex(size)}")
    A(f"s_mov_b32 s{s+3}, 0x20000")
def S(r): return f"s[{r}:{r+3}]"

def spin(A, off, target, addr="v3"):
    L = lab("sp"); D = lab("sd")
    A.raw("s_mov_b32 s66, 0")
    A.lgq = []
    A.label(L)
    A.raw(f"ds_read_b32 v6, {addr} offset:{off}")
    A.raw("s_add_u32 s66, s66, 1")
    A.raw(f"s_cmp_gt_u32 s66, {8*SPIN_MAX}")
    A.raw("s_waitcnt lgkmcnt(0)")
    A.raw(f"s_cbranch_scc1 {D}")
    A.raw("v_readfirstlane_b32 s11, v6")
    A.raw(f"s_cmp_ge_u32 s11, {target}")
    A.raw(f"s_cbranch_scc0 {L}")
    A.label(D)

def set_flag(A, off, val):
    A(f"v_mov_b32 v6, {val}")
    A(f"ds_write_b32 v3, v6 offset:{off}")

def arrive(A, off, n, last_fn, addr="v3"):
    L = lab("ar")
    A("s_mov_b64 exec, 1")
    A(f"ds_add_rtn_u32 v6, {addr}, v5 offset:{off}")
    A("s_mov_b64 exec, -1")
    if last_fn is None: return
    A("v_readfirstlane_b32 s11, v6")
    A(f"s_cmp_lg_u32 s11, {n-1}")
    A(f"s_cbranch_scc1 {L}")
    st = A.snapshot()
    last_fn()
    A.restore(st)
    A.label(L)

def gsignal(A, base_s, stride, nrep):
    A(f"v_mul_u32_u24 v7, {stride}, v1")
    A(f"v_add_u32 v7, {base_s}, v7")
    A(f"s_mov_b64 exec, {(1 << nrep) - 1:#x}")
    A("global_atomic_add v7, v5, s[4:5] sc1")
    A("s_mov_b64 exec, -1")

def poll(A, vaddr, vtgt, mask_ops, base="s[4:5]"):
    L = lab("po"); D = lab("pd")
    A("s_mov_b32 s11, 0")
    A.wait_all(lg=False)
    A.label(L)
    A.raw(f"global_load_dword v6, {vaddr}, {base} sc1")
    A.raw("s_add_u32 s11, s11, 1")
    A.raw("s_waitcnt vmcnt(0)")
    A.raw(f"v_cmp_lt_u32 vcc, v6, {vtgt}")
    A.raw(f"s_cmp_gt_u32 s11, {SPIN_MAX}")
    A.raw(f"s_cbranch_scc1 {D}")
    if mask_ops:
        A.raw(f"s_and_b64 s[66:67], vcc, {mask_ops}")
        A.raw(f"s_cbranch_scc1 {L}")
    else:
        A.raw("s_nop 1")
        A.raw(f"s_cbranch_vccnz {L}")
    A.label(D)

def unpack(A, lo, hi, src):
    A(f"v_lshlrev_b32 v{lo}, 16, v{src}"); A(f"v_and_b32 v{hi}, s10, v{src}")
def bfround(A, r):
    A(f"v_cvt_pk_bf16_f32 v{r}, v{r}, v{r}"); A(f"v_and_b32 v{r}, s10, v{r}")

def prologue(A):
    A("s_cmp_ge_u32 s2, 256"); A("s_cbranch_scc1 L_end")
    A("s_load_dwordx16 s[16:31], s[0:1], 0")
    A("s_load_dwordx8 s[32:39], s[0:1], 64")
    A("s_load_dwordx4 s[12:15], s[0:1], 96")
    A("s_load_dwordx2 s[4:5], s[0:1], 112")
    A("v_lshrrev_b32 v2, 6, v0"); A("v_and_b32 v1, 63, v0")
    A("v_readfirstlane_b32 s3, v2")
    A("s_and_b32 s6, s2, 7"); A("s_lshr_b32 s7, s2, 3")
    A("s_and_b32 s8, s6, 1"); A("s_lshl_b32 s8, s8, 3"); A("s_and_b32 s60, s7, 7"); A("s_add_u32 s8, s8, s60")
    A("s_lshr_b32 s9, s6, 1"); A("s_lshl_b32 s9, s9, 2"); A("s_lshr_b32 s60, s7, 3"); A("s_add_u32 s9, s9, s60")
    A("s_mov_b32 s10, 0xffff0000")
    A(f"v_mov_b32 v3, {MISC:#x}"); A("v_lshlrev_b32 v4, 4, v1"); A("v_mov_b32 v5, 1")
    A.stamp(0, ST)

def role_a(A):
    A("s_setprio 1")
    A("v_lshrrev_b32 v8, 3, v1")
    A("v_and_b32 v9, 7, v1")
    A("s_lshl_b32 s60, s6, 6"); A("s_lshl_b32 s61, s3, 4"); A("s_add_u32 s60, s60, s61")
    A("v_lshl_add_u32 v10, v9, 1, s60")
    A("v_lshlrev_b32 v11, 13, v8"); A("v_lshl_add_u32 v11, v10, 1, v11")
    A("s_lshl_b32 s61, s7, 16"); A("v_add_u32 v11, s61, v11")
    A("v_add_u32 v12, 0xfffff400, v11")
    A("v_lshlrev_b32 v13, 3, v10")
    A("s_mov_b32 s63, 4096")
    srd(A, R0, P_K, 0, 0x200000)
    for i in range(3): A(f"buffer_load_dword v{16+i}, v12, {S(R0)}, 0 offen offset:{1024*i}")
    for i in range(8): A(f"buffer_load_dword v{19+i}, v11, {S(R0)}, {'s63' if i >= 4 else '0'} offen offset:{1024*(i%4)}")
    srd(A, R1, P_SH, 0, 4096)
    A(f"buffer_load_dwordx4 v[44:47], v13, {S(R1)}, 0 offen")
    srd(A, R2, P_V, 0, 0x200000)
    for i in range(8): A(f"buffer_load_dword v{27+i}, v11, {S(R2)}, {'s63' if i >= 4 else '0'} offen offset:{1024*(i%4)}")
    srd(A, R3, P_Q, 0, 0x200000)
    for i in range(8): A(f"buffer_load_dword v{35+i}, v11, {S(R3)}, {'s63' if i >= 4 else '0'} offen offset:{1024*(i%4)}")
    A("s_lshr_b32 s68, s3, 1"); A("s_and_b32 s69, s3, 1")
    A("s_lshl_b32 s70, s6, 6"); A("s_lshl_b32 s60, s7, 1"); A("s_add_u32 s70, s70, s60"); A("s_add_u32 s70, s70, s68")
    A(f"s_mul_i32 s71, s68, {CH_SZ}")
    A(f"s_mul_i32 s72, s69, {U0_OFF - U1_OFF}"); A("s_add_u32 s72, s72, s71"); A(f"s_add_u32 s72, s72, {U1_OFF}")
    for r in range(4): A(f"v_mov_b32 v{96+r}, 0")
    A("v_add_u32 v14, s72, v4")
    A("s_mov_b32 exec_lo, 0x0fffffff"); A("s_mov_b32 exec_hi, 0")
    A("ds_write_b128 v14, v[96:99] offset:4096")
    A("s_mov_b64 exec, -1")
    A("v_lshl_add_u32 v14, v1, 2, v3")
    A("ds_write_b32 v14, v96")
    A.barrier()
    A.stamp(1, ST)
    srd(A, R0, P_WS, WS_UT, 512 * UT_PITCH)
    srd(A, R1, P_WS, WS_XT, 0x200000)
    A("v_lshlrev_b32 v48, 16, v44"); A("v_lshlrev_b32 v49, 16, v46")
    A("v_and_b32 v50, s10, v44");    A("v_and_b32 v51, s10, v46")
    A("v_lshlrev_b32 v52, 16, v45"); A("v_lshlrev_b32 v53, 16, v47")
    A("v_and_b32 v54, s10, v45");    A("v_and_b32 v55, s10, v47")
    KF, UF = 56, 78
    for i in range(11): unpack(A, KF+2*i, KF+2*i+1, 16+i)
    A(f"v_mul_u32_u24 v14, {UT_PITCH}, v10")
    A("v_lshlrev_b32 v15, 4, v8"); A("v_sub_u32 v15, v14, v15")
    A("s_lshl_b32 s60, s7, 7"); A("s_sub_u32 s60, 4080, s60"); A("v_add_u32 v15, s60, v15")
    A(f"s_mov_b32 s62, {UT_PITCH}")
    for i in range(8):
        u = UF + 2*i
        A(f"v_pk_mul_f32 {vr(u,2)}, {vr(KF+2*(i+3),2)}, v[48:49]")
        for j in (1, 2, 3):
            A(f"v_pk_fma_f32 {vr(u,2)}, {vr(KF+2*(i+3-j),2)}, {vr(48+2*j,2)}, {vr(u,2)}")
    for i in range(8):
        u = UF + 2*i
        unpack(A, 94, 95, 27+i)
        A(f"v_pk_mul_f32 {vr(u,2)}, {vr(u,2)}, v[94:95]")
    for ch in range(2):
        for m in range(4):
            A(f"v_cvt_pk_bf16_f32 v{96+4*ch+m}, v{UF+2*(7-2*m)+ch}, v{UF+2*(6-2*m)+ch}")
        tg_ut = A(f"buffer_store_dwordx4 {vr(96+4*ch,4)}, v15, {S(R0)}, {'s62' if ch else '0'} offen sc1")
    Lp = lab("pad")
    A("s_cmp_lg_u32 s7, 0"); A(f"s_cbranch_scc1 {Lp}")
    for r in range(4): A(f"v_mov_b32 v{112+r}, 0")
    A("v_lshl_add_u32 v14, v8, 4, v14"); A("v_add_u32 v14, 4096, v14")
    A("s_mov_b32 exec_hi, 0")
    A.raw(f"buffer_store_dwordx4 v[112:115], v14, {S(R0)}, 0 offen sc1")
    A.raw(f"buffer_store_dwordx4 v[112:115], v14, {S(R0)}, s62 offen sc1")
    A("s_mov_b64 exec, -1")
    A.raw("s_waitcnt vmcnt(0)")
    A.label(Lp)
    A.stamp(2, ST)
    A("s_mov_b32 s64, 0x05040100"); A("s_mov_b32 s65, 0x07060302")
    for m in range(4):
        A(f"v_perm_b32 v{104+m}, v{35+2*m+1}, v{35+2*m}, s64")
        A(f"v_perm_b32 v{108+m}, v{35+2*m+1}, v{35+2*m}, s65")
    A("v_lshlrev_b32 v14, 12, v10"); A("v_lshl_add_u32 v14, v8, 4, v14")
    A("s_lshl_b32 s60, s7, 7"); A("s_add_u32 s61, s60, 4096")
    A(f"buffer_store_dwordx4 v[104:107], v14, {S(R1)}, s60 offen sc1")
    tg_xt = A(f"buffer_store_dwordx4 v[108:111], v14, {S(R1)}, s61 offen sc1")
    A("v_lshrrev_b32 v8, 2, v1"); A("v_lshlrev_b32 v8, 4, v8"); A("v_and_b32 v9, 3, v1"); A("v_lshl_add_u32 v8, v9, 2, v8")
    A("s_lshl_b32 s60, s69, 11"); A("s_add_u32 s60, s60, 4"); A("v_add_u32 v8, s60, v8")
    A("v_lshrrev_b32 v10, 4, v1"); A("v_lshlrev_b32 v10, 2, v10"); A("v_bfe_u32 v11, v1, 2, 2"); A("v_add3_u32 v10, v10, v11, v9")
    A("v_lshlrev_b32 v10, 2, v10"); A("v_add_u32 v10, -60, v10")
    A("s_lshl_b32 s73, s70, 12")
    srd(A, R2, P_H, 0, 4096, "s73")
    A("s_lshl_b32 s60, s6, 10"); A("s_and_b32 s61, s7, 1"); A("s_lshl_b32 s61, s61, 7"); A("s_add_u32 s60, s60, s61"); A(f"s_add_u32 s60, s60, {SY_1A:#x}")
    A.wait_vm_tag(tg_ut)
    arrive(A, C_P1A, 5, lambda: gsignal(A, "s60", 256, 4))
    A.stamp(3, ST)
    A("s_lshl_b32 s61, s69, 13"); A("s_add_u32 s61, s61, s71"); A("s_add_u32 s61, s61, 256")
    for i in range(8):
        A(f"s_add_u32 m0, s61, {768*i}")
        A(f"buffer_load_dwordx4 v8, {S(R2)}, 0 offen offset:{256*i} lds")
    A("s_mov_b32 m0, s71")
    A(f"buffer_load_dword v10, {S(R2)}, 0 offen lds")
    A("s_lshl_b32 s60, s6, 7"); A(f"s_add_u32 s60, s60, {SY_1B:#x}")
    A.wait_vm_tag(tg_xt)
    arrive(A, C_P1B, 8, lambda: gsignal(A, "s60", 1024, 16))
    A("s_lshl_b32 s60, s69, 1"); A("v_add_u32 v8, s60, v4")
    A(f"s_mul_i32 s60, s70, {UT_PITCH}")
    srd(A, R0, P_WS, WS_UT, 4160, "s60")
    A("v_lshrrev_b32 v10, 4, v1")
    A("v_and_b32 v11, 15, v1")
    A("v_lshrrev_b32 v12, 2, v11"); A("v_add_u32 v12, v12, v10"); A("v_lshlrev_b32 v12, 6, v12"); A("v_lshl_add_u32 v12, v9, 4, v12")
    A("s_lshl_b32 s60, s69, 10"); A("s_add_u32 s60, s60, s71"); A("v_add_u32 v12, s60, v12")
    A("v_lshrrev_b32 v13, 1, v11"); A("v_lshlrev_b32 v13, 2, v13"); A("v_sub_u32 v13, v10, v13"); A("v_lshlrev_b32 v13, 4, v13")
    A("v_and_b32 v14, 1, v1"); A(f"v_mul_u32_u24 v14, {U0_OFF - U1_OFF}, v14"); A("v_sub_u32 v13, v13, v14")
    A("s_lshl_b32 s60, s69, 8"); A("s_add_u32 s60, s60, s71"); A(f"s_add_u32 s60, s60, {U0_OFF + 28*16}")
    A("v_add_u32 v13, s60, v13")
    A("s_lshl_b32 s60, s68, 2"); A("v_add_u32 v15, s60, v3")
    A("v_lshlrev_b32 v9, 7, v10"); A("v_lshl_add_u32 v9, v11, 2, v9")
    A("v_lshlrev_b32 v14, 2, v9")
    srd(A, R1, P_WS, WS_XT, 4096, "s73")
    srd(A, R2, P_WS, WS_ST1, 16384)
    srd(A, R3, P_WS, WS_MODP, 49152)
    A("v_and_b32 v96, 3, v1"); A("v_mul_u32_u24 v96, 12288, v96"); A("v_bfe_u32 v97, v1, 2, 2"); A("v_lshl_add_u32 v97, v97, 11, v96")
    A("s_lshl_b32 s74, s70, 2")
    A("s_and_b32 s60, s70, 0xfffffffe"); A("s_lshl_b32 s60, s60, 1")
    A(f"s_load_dword s75, s[{P_D}:{P_D+1}], s60")
    A("s_mov_b32 m0, s72")
    spin(A, F_S1A, 1)
    A.stamp(4, ST)
    for i in range(4):
        tg = A(f"buffer_load_dwordx4 v8, {S(R0)}, 0 offen offset:{1024*i} sc1 lds")
    A.wait_vm_tag(tg)
    A.stamp(5, ST)
    arrive(A, C_FILL, 2, None, "v15")
    spin(A, C_FILL, 2, "v15")
    A.stamp(6, ST)
    ACC = 16
    FR = [128, 192]
    def rd(setb, mi, idx):
        j = idx // 2
        if idx % 2 == 0: A(f"ds_read_b128 {vr(setb+4*j,4)}, v13 offset:{3584 - 512*j + 64*mi}")
        else: A(f"ds_read_b128 {vr(setb+32+4*j,4)}, v12 offset:{2048*j + 256*mi}")
    pairs = sorted([(q, jp) for q in range(8) for jp in range(8) if q + jp <= 7], key=lambda t: (max(t), t))
    for idx in range(16): rd(FR[0], 0, idx)
    seen = set()
    XTR, STR = 48, 56
    eloads = []
    for jj in range(4):
        for rr in range(2):
            eloads.append(f"buffer_load_dword v{XTR+2*jj+rr}, v9, {S(R1)}, s76 offen offset:{512*jj+64*rr} sc1")
            eloads.append(f"buffer_load_dwordx4 {vr(STR+8*jj+4*rr,4)}, v14, {S(R2)}, s{77 + jj//2} offen offset:{2048*(jj%2)+256*rr} sc1")
    eloads.insert(0, f"buffer_load_dword v96, v97, {S(R3)}, s74 offen sc1")
    A("s_lshl_b32 s76, s69, 11"); A("s_lshl_b32 s77, s69, 13"); A("s_add_u32 s78, s77, 4096")
    for mi in range(4):
        sb = FR[mi % 2]; nb = FR[(mi + 1) % 2]
        nxt = 0
        if mi == 1: spin(A, F_S1B, 1)
        for n, (q, jp) in enumerate(pairs):
            t = q + jp
            c = vr(ACC+4*t, 4) if t in seen else "0"
            seen.add(t)
            A(f"v_mfma_f32_16x16x32_bf16 {vr(ACC+4*t,4)}, {vr(sb+4*jp,4)}, {vr(sb+32+4*q,4)}, {c}")
            if mi < 3 and n >= 2 and n % 2 == 0 and nxt < 16:
                rd(nb, mi + 1, nxt); nxt += 1
            if mi in (1, 2) and n % 4 == 1 and eloads:
                A(eloads.pop(0))
        assert mi == 3 or nxt == 16
    assert not eloads
    A.stamp(7, ST)
    A("s_lshl_b32 s60, s3, 12"); A(f"s_add_u32 s60, s60, {EX_OFF}"); A("v_add_u32 v12, s60, v4")
    A("s_xor_b32 s60, s3, 1"); A("s_lshl_b32 s60, s60, 12"); A(f"s_add_u32 s60, s60, {EX_OFF}"); A("v_add_u32 v13, s60, v4")
    A("s_sub_u32 s60, s71, s76"); A(f"s_add_u32 s60, s60, {U1_OFF + 4092 - 1600}"); A("v_sub_u32 v8, s60, v9")
    UR = 88
    for jj in range(4):
        for rr in range(2):
            A(f"ds_read_b32 v{UR+2*jj+rr}, v8 offset:{1600 - 512*jj - 64*rr}")
    A.raw("s_nop 3")
    L1, L2 = lab("x"), lab("x")
    A("s_cmp_eq_u32 s69, 0"); A(f"s_cbranch_scc0 {L1}")
    for t in range(4): A.raw(f"ds_write_b128 v12, {vr(ACC+16+4*t,4)} offset:{1024*t}")
    A.raw(f"s_branch {L2}")
    A.label(L1)
    for t in range(4): A.raw(f"ds_write_b128 v12, {vr(ACC+4*t,4)} offset:{1024*t}")
    for r in range(16): A.raw(f"v_mov_b32 v{ACC+r}, v{ACC+16+r}")
    A.label(L2)
    A.raw("s_waitcnt lgkmcnt(0)"); A.lgq = []
    arrive(A, C_EX, 2, None, "v15")
    A(f"v_add_f32_dpp v96, v96, v96 quad_perm:[1,0,3,2] {DPP}")
    A(f"v_add_f32_dpp v96, v96, v96 quad_perm:[2,3,0,1] {DPP}")
    bfround(A, 96)
    A("v_add_f32 v97, 1.0, v96"); bfround(A, 97)
    A("v_readlane_b32 s60, v96, 0"); A("v_readlane_b32 s61, v97, 4"); A("v_readlane_b32 s62, v96, 8")
    A("s_lshl_b32 s63, s75, 16"); A("s_and_b32 s75, s75, s10"); A("s_cmp_eq_u32 s68, 0"); A("s_cselect_b32 s75, s63, s75")
    A("v_mov_b32 v98, s61"); A("v_mov_b32 v99, s60"); A("v_mov_b32 v100, s75"); A("v_mov_b32 v101, s62")
    A("s_lshl_b32 s60, s70, 6")
    srd(A, R0, P_WS, WS_X1B, 0x200000 - 511 * 64, "s60")
    A("v_lshlrev_b32 v9, 16, v10"); A("v_lshl_add_u32 v9, v11, 2, v9")
    A("s_lshl_b32 s76, s69, 20")
    for jj in range(4):
        for rr in range(2):
            k = 2*jj + rr; st = STR + 4*k; x = 128 + 4*k
            unpack(A, x, x+1, XTR+k)
            A(f"v_fma_f32 v{x+2}, v{x}, v{st}, v{st+1}")
            A(f"v_fma_f32 v{x+3}, v{x+1}, v{st+2}, v{st+3}")
            A(f"v_pk_fma_f32 {vr(x+2,2)}, {vr(x+2,2)}, v[98:99], v[98:99] op_sel:[0,0,1] op_sel_hi:[1,0,1]")
            A(f"v_and_b32 v{st}, s10, v{UR+k}"); A(f"v_lshlrev_b32 v{st+1}, 16, v{UR+k}")
            A(f"v_pk_fma_f32 {vr(ACC+2*k,2)}, {vr(st,2)}, v[100:101], {vr(ACC+2*k,2)} op_sel:[0,0,0] op_sel_hi:[1,0,1]")
    spin(A, C_EX, 2, "v15")
    A.stamp(8, ST)
    for t in range(4): A(f"ds_read_b128 {vr(112+4*t,4)}, v13 offset:{1024*t}")
    for jj in range(4):
        for rr in range(2):
            k = 2*jj + rr; x = 128 + 4*k; a = ACC + 2*k
            A(f"v_pk_add_f32 {vr(a,2)}, {vr(a,2)}, {vr(112+2*k,2)}")
            A(f"v_pk_mul_f32 {vr(a,2)}, {vr(a,2)}, {vr(x+2,2)}")
            A(f"v_pk_fma_f32 {vr(a,2)}, {vr(a,2)}, v[100:101], {vr(x,2)} op_sel:[0,1,0] op_sel_hi:[1,1,1]")
            A(f"v_cvt_pk_bf16_f32 v{XTR+k}, v{a}, v{a+1}")
            A(f"s_add_u32 s60, s76, {(8*jj+rr)*32768}")
            tg = A(f"buffer_store_dword v{XTR+k}, v9, {S(R0)}, s60 offen sc1")
    A.stamp(9, ST)
    A("s_lshl_b32 s60, s6, 7"); A(f"s_add_u32 s60, s60, {SY_2:#x}")
    A.wait_vm_tag(tg)
    arrive(A, C_S2, 8, lambda: gsignal(A, "s60", 1024, 16))
    A("s_setprio 0")
    A.stamp(10, ST)
    A.raw("s_branch L_main")

def role_b(A):
    A("s_sub_u32 s68, s3, 4")
    Lz, Lz1 = lab("z"), lab("z")
    A(f"v_lshlrev_b32 v8, 7, v1"); A("v_mov_b32 v9, 0")
    A.wait_all(vm=False)
    A("s_cmp_lg_u32 s3, 7"); A(f"s_cbranch_scc1 {Lz}")
    A("s_cmp_ge_u32 s2, 8"); A(f"s_cbranch_scc1 {Lz}")
    A("s_cmp_lg_u32 s2, 0"); A(f"s_cbranch_scc1 {Lz1}")
    A(f"v_add_u32 v8, {SY_1A:#x}, v8")
    for i in range(3):
        A.raw("global_store_dword v8, v9, s[4:5] sc1")
        A.raw("v_add_u32 v8, 0x2000, v8")
    A.raw("s_waitcnt vmcnt(0)")
    A.raw("v_lshlrev_b32 v8, 7, v1")
    A.raw("s_mov_b64 exec, 3")
    A.raw(f"global_store_dword v8, v5, s[{P_DBG}:{P_DBG+1}] sc1")
    A.raw("s_mov_b64 exec, -1")
    A.raw(f"s_branch {Lz}")
    A.label(Lz1)
    A.raw("s_lshl_b32 s60, s2, 13"); A.raw(f"s_add_u32 s60, s60, {SY_1P - 0x2000:#x}")
    A.raw("v_add_u32 v8, s60, v8")
    A.raw("global_store_dword v8, v9, s[4:5] sc1")
    A.label(Lz)
    A("s_lshl_b32 s60, s6, 5"); A("s_add_u32 s60, s60, s7"); A("s_lshl_b32 s60, s60, 3"); A("s_lshl_b32 s61, s68, 1"); A("s_add_u32 s69, s60, s61")
    A("v_lshrrev_b32 v8, 5, v1"); A("v_and_b32 v9, 31, v1"); A("v_lshlrev_b32 v10, 10, v8"); A("v_lshl_add_u32 v10, v9, 4, v10")
    A("s_lshl_b32 s60, s69, 10")
    srd(A, R0, P_Q, 0, 0x200000)
    A(f"buffer_load_dwordx4 v[16:19], v10, {S(R0)}, s60 offen")
    A(f"buffer_load_dwordx4 v[20:23], v10, {S(R0)}, s60 offen offset:512")
    A("s_and_b32 s70, s2, 3"); A("s_lshr_b32 s71, s2, 2")
    A("s_lshl_b32 s60, s70, 7"); A("s_lshl_b32 s61, s68, 5"); A("s_add_u32 s60, s60, s61")
    A("v_lshrrev_b32 v11, 3, v1"); A("v_add_u32 v11, s60, v11")
    A("v_mul_u32_u24 v12, 6144, v11"); A("v_and_b32 v13, 7, v1"); A("v_lshl_add_u32 v12, v13, 4, v12")
    A("v_lshlrev_b32 v11, 1, v11")
    A("s_cmp_lt_u32 s2, 192"); A("s_cselect_b32 s62, 0x300000, 0"); A("s_cselect_b32 s72, 0xc000, 0")
    srd(A, R1, P_WM, 0, "s62")
    srd(A, R2, P_C, 0, 1024)
    A("s_lshl_b32 s60, s71, 7")
    for i in range(4):
        A(f"buffer_load_dwordx4 {vr(24+4*i,4)}, v12, {S(R1)}, s60 offen")
        if i < 3: A("s_add_u32 s60, s60, 49152")
    for i in range(4): A(f"buffer_load_ushort v{40+i}, v11, {S(R2)}, 0 offen offset:{16*i}")
    for r in range(4): A(f"v_mov_b32 v{44+r}, 0")
    A("s_and_b32 s60, s68, 1"); A("s_lshl_b32 s60, s60, 10"); A(f"s_add_u32 s60, s60, {MISC + M_CACC:#x}")
    A("v_add_u32 v14, s60, v4")
    A("ds_write_b128 v14, v[44:47]")
    A.barrier()
    A.stamp(1, ST)
    A("s_mov_b32 s63, 0x3f803f80")
    for i in range(8):
        A(f"v_dot2c_f32_bf16 v{44 + (i & 1)}, s63, v{16+i}")
        A(f"v_dot2c_f32_bf16 v{46 + (i & 1)}, v{16+i}, v{16+i}")
    A("v_add_f32 v44, v44, v45"); A("v_add_f32 v46, v46, v47")
    for m in ("quad_perm:[1,0,3,2] " + DPP, "quad_perm:[2,3,0,1] " + DPP, "row_half_mirror " + DPP, "row_mirror " + DPP, "row_bcast:15 row_mask:0xa bank_mask:0xf"):
        A(f"v_add_f32_dpp v44, v44, v44 {m}"); A(f"v_add_f32_dpp v46, v46, v46 {m}")
    A("v_mul_f32 v44, 0x3b000000, v44"); A("v_mul_f32 v46, 0x3b000000, v46")
    A("v_fma_f32 v46, -v44, v44, v46"); A("v_max_f32 v46, 0, v46"); A("v_add_f32 v46, 0x3727c5ac, v46")
    A("v_rsq_f32 v46, v46")
    srd(A, R0, P_WS, WS_ST1, 16384)
    A("v_lshlrev_b32 v8, 3, v8"); A("s_lshl_b32 s60, s69, 3")
    A("v_mul_f32 v47, v44, v46"); A("v_sub_f32 v47, 0, v47")
    A("s_mov_b32 exec_lo, 0x10000"); A("s_mov_b32 exec_hi, 0x10000")
    A(f"buffer_store_dwordx2 v[46:47], v8, {S(R0)}, s60 offen sc1")
    A("s_mov_b64 exec, -1")
    A("s_lshr_b32 s73, s68, 1"); A("s_and_b32 s74, s68, 1")
    A("s_lshl_b32 s75, s8, 1"); A("s_add_u32 s75, s75, s74")
    A("s_cmp_eq_u32 s73, 0"); A(f"s_cselect_b32 s60, s{P_WG}, s{P_WU}"); A(f"s_cselect_b32 s61, s{P_WG+1}, s{P_WU+1}")
    srd(A, R4, 60, 0, 1792 * 1024)
    A("s_mul_i32 s80, s75, 57344"); A("s_mul_i32 s61, s9, 224"); A("s_add_u32 s80, s80, s61")
    A("v_lshlrev_b32 v8, 2, v1")
    for t in range(4):
        c = 40 + t
        A(f"v_lshlrev_b32 v{c}, 16, v{c}")
        A(f"v_mul_f32 v48, 0xbfb8aa3b, v{c}"); A("v_exp_f32 v48, v48"); A("v_add_f32 v48, 1.0, v48"); A("v_rcp_f32 v48, v48")
        A(f"v_mul_f32 v{c}, v{c}, v48"); bfround(A, c)
    for t in range(4):
        for j in range(4):
            w = 24 + 4*t + j
            unpack(A, 88, 89, w)
            if t == 0: A(f"v_pk_mul_f32 {vr(80+2*j,2)}, v[88:89], v[40:41] op_sel:[0,0] op_sel_hi:[1,0]")
            else:
                sel = t & 1
                A(f"v_pk_fma_f32 {vr(80+2*j,2)}, v[88:89], {vr(40+(t&~1),2)}, {vr(80+2*j,2)} op_sel:[0,{sel},0] op_sel_hi:[1,{sel},1]")
    WR, DR = 48, 64
    for j in range(8): A(f"v_add_f32_dpp v{80+j}, v{80+j}, v{80+j} row_ror:8 {DPP}")
    A("v_lshrrev_b32 v9, 4, v1"); A("s_lshl_b32 s61, s68, 2"); A("v_add_u32 v9, s61, v9"); A("v_lshlrev_b32 v9, 8, v9"); A("v_lshl_add_u32 v9, v13, 5, v9")
    A(f"v_add_u32 v9, {MISC + M_MODL:#x}, v9")
    A("s_mov_b32 exec_lo, 0x00ff00ff"); A("s_mov_b32 exec_hi, 0x00ff00ff")
    A("ds_write_b128 v9, v[80:83]"); A("ds_write_b128 v9, v[84:87] offset:16")
    A("s_mov_b64 exec, -1")
    srd(A, R1, P_WS, WS_MODP, "s72")
    def mod_final():
        A(f"v_lshl_add_u32 v9, v1, 2, v3")
        for p in range(16): A(f"ds_read_b32 v{96+p}, v9 offset:{M_MODL + 256*p}")
        for st in (8, 4, 2, 1):
            for p in range(st): A(f"v_add_f32 v{96+p}, v{96+p}, v{96+p+st}")
        A("s_mul_i32 s61, s70, 12288"); A("s_lshl_b32 s62, s71, 8"); A("s_add_u32 s61, s61, s62")
        A(f"buffer_store_dword v96, v8, {S(R1)}, s61 offen sc1")
        A.wait_all()
    arrive(A, C_MOD, 4, mod_final)
    A.stamp(2, ST)
    A("s_cmp_lt_u32 s2, 224"); A("s_cselect_b32 s62, 0x1c0000, 0")
    srd(A, R2, P_WD, 0, "s62")
    srd(A, R3, P_WS, WS_WDP, "s62")
    Lb = lab("bo")
    A("s_cmp_lg_u32 s3, 7"); A(f"s_cbranch_scc1 {Lb}")
    st = A.snapshot()
    A("s_and_b32 s60, s2, 1"); A("s_lshl_b32 s60, s60, 7"); A("v_mov_b32 v9, s60")
    A("s_mov_b64 exec, 1")
    poll(A, "v9", "v5", None, base=f"s[{P_DBG}:{P_DBG+1}]")
    A("s_mov_b64 exec, -1")
    A("s_lshl_b32 s60, s6, 10"); A("s_and_b32 s61, s7, 1"); A("s_lshl_b32 s61, s61, 7"); A("s_add_u32 s60, s60, s61"); A(f"s_add_u32 s60, s60, {SY_1A:#x}")
    arrive(A, C_P1A, 5, lambda: gsignal(A, "s60", 256, 4))
    A.restore(st)
    A.label(Lb)
    A("s_lshl_b32 s60, s6, 7"); A(f"s_add_u32 s60, s60, {SY_1B:#x}")
    A.wait_all(lg=False)
    arrive(A, C_P1B, 8, lambda: gsignal(A, "s60", 1024, 16))
    A.stamp(3, ST)
    A("s_lshl_b32 s60, s68, 8"); A("v_add_u32 v16, s60, v8")
    A("s_lshl_b32 s81, s2, 13"); A("s_add_u32 s82, s81, 4096")
    def raw_w(dst, n):
        for i in range(n):
            A.raw(f"buffer_load_dword v{dst+i}, v8, {S(R4)}, s80 offen offset:{3584*(i%2)}")
            if i % 2 == 1: A.raw("s_add_u32 s80, s80, 7168")
    def raw_wd():
        for i in range(8):
            A.raw(f"buffer_load_dword v{DR+i}, v16, {S(R2)}, {'s82' if i >= 4 else 's81'} offen offset:{1024*(i%4)}")
    Le = lab("e")
    A("s_cmp_eq_u32 s3, 7"); A(f"s_cbranch_scc1 {Le}")
    raw_w(WR, 16); raw_wd()
    A("s_cmp_lg_u32 s3, 6"); A(f"s_cbranch_scc1 {Le}")
    raw_w(128, 16)
    A.label(Le)
    A("v_lshrrev_b32 v10, 5, v1"); A("v_mul_u32_u24 v10, 229376, v10"); A("v_bfe_u32 v11, v1, 3, 2"); A("v_lshl_add_u32 v10, v11, 10, v10"); A("v_lshl_add_u32 v10, v13, 4, v10")
    A("s_mul_i32 s76, s68, 458752"); A("s_lshl_b32 s60, s71, 12"); A("s_add_u32 s76, s76, s60"); A("s_lshl_b32 s60, s70, 8"); A("s_add_u32 s76, s76, s60")
    A("v_lshrrev_b32 v11, 3, v1"); A("s_lshl_b32 s60, s73, 4"); A("v_add_u32 v12, s60, v13")
    A("v_lshl_add_u32 v14, v11, 5, v12"); A("v_lshl_add_u32 v14, v14, 3, v3")
    A("v_lshlrev_b32 v12, 4, v12"); A("v_lshl_add_u32 v12, v11, 15, v12")
    A("v_and_b32 v11, 3, v1"); A("v_mul_u32_u24 v11, 12288, v11"); A("v_and_b32 v15, 60, v1"); A("v_add_u32 v11, v11, v15")
    A("s_lshl_b32 s77, s75, 6"); A("s_add_u32 s78, s77, 8192"); A("s_add_u32 s77, s77, 6144")
    srd(A, R1, P_WS, WS_MODP, 49152)
    A("s_mul_i32 s60, s9, 7*32768")
    srd(A, R0, P_WS, WS_WP, 7 * 32768, "s60")
    A("s_lshl_b32 s79, s75, 10")
    Lw, Lq = lab("w7"), lab("w7")
    A("s_cmp_lg_u32 s3, 7"); A(f"s_cbranch_scc1 {Lw}")
    st = A.snapshot()
    A("s_lshl_b32 s60, s6, 10"); A("s_and_b32 s61, s7, 3"); A("s_lshl_b32 s61, s61, 8"); A("s_add_u32 s60, s60, s61"); A(f"s_add_u32 s60, s60, {SY_1A:#x}")
    A("s_and_b32 s61, s7, 15"); A("s_lshl_b32 s61, s61, 10"); A(f"s_add_u32 s61, s61, {SY_1B - 8*128:#x}")
    A("v_cmp_gt_u32 vcc, 8, v1")
    A("v_mov_b32 v15, s61"); A("v_mov_b32 v9, s60"); A("v_cndmask_b32 v9, v15, v9, vcc"); A("v_lshl_add_u32 v9, v1, 7, v9")
    A("v_mov_b32 v15, 32"); A("v_cndmask_b32 v15, v15, 16, vcc")
    A("s_mov_b64 s[64:65], 3")
    A("s_mov_b64 exec, 0xff03")
    poll(A, "v9", "v15", "s[64:65]")
    A("s_mov_b64 s[64:65], vcc")
    A("s_mov_b64 exec, -1")
    set_flag(A, F_S1A, 1)
    A.stamp(4, ST)
    A("s_cmp_eq_u64 s[64:65], 0"); A(f"s_cbranch_scc1 {Lq}")
    A("s_mov_b64 exec, 0xff00")
    poll(A, "v9", "v15", None)
    A("s_mov_b64 exec, -1")
    A.label(Lq)
    set_flag(A, F_S1B, 1)
    A.wait_all()
    A.restore(st)
    A.label(Lw)
    spin(A, F_S1B, 1)
    A.stamp(5, ST)
    Le = lab("e")
    A("s_cmp_lg_u32 s3, 7"); A(f"s_cbranch_scc1 {Le}")
    raw_w(WR, 16); raw_wd()
    A.label(Le)
    for i in range(16): A.mark_vm([WR+i])
    for i in range(8): A.mark_vm([DR+i])
    A(f"buffer_load_dword v80, v11, {S(R1)}, s78 offen sc1")
    A(f"buffer_load_dword v81, v11, {S(R1)}, s77 offen sc1")
    for i in range(16): unpack(A, 96+2*i, 97+2*i, WR+i)
    for m in ("quad_perm:[1,0,3,2]", "quad_perm:[2,3,0,1]"):
        A(f"v_add_f32_dpp v80, v80, v80 {m} {DPP}"); A(f"v_add_f32_dpp v81, v81, v81 {m} {DPP}")
    bfround(A, 80); bfround(A, 81)
    A("v_add_f32 v80, 1.0, v80"); bfround(A, 80)
    A("s_mov_b32 s64, s76"); A("s_mov_b32 s65, s79")
    for i in range(16):
        A(f"v_readlane_b32 s{68+i}, v80, {4*i}"); A(f"v_readlane_b32 s{84+i}, v81, {4*i}")
    for r in range(82, 88): A(f"v_mov_b32 v{r}, 0")
    for hf in range(2):
        P0, P1 = 48 + 8*hf, 52 + 8*hf
        for m in range(4):
            for e in range(2):
                i = 8*hf + 2*m + e; w = 96 + 2*i; sel = i & 1
                A(f"v_pk_fma_f32 v[82:83], {vr(w,2)}, {sr(84+(i&~1),2)}, v[82:83] op_sel:[0,{sel},0] op_sel_hi:[1,{sel},1]")
                A(f"v_pk_mul_f32 {vr(w,2)}, {vr(w,2)}, {sr(68+(i&~1),2)} op_sel:[0,{sel}] op_sel_hi:[1,{sel}]")
            w = 96 + 2*(8*hf + 2*m)
            A(f"v_cvt_pk_bf16_f32 v{P0+m}, v{w}, v{w+2}")
            A(f"v_cvt_pk_bf16_f32 v{P1+m}, v{w+1}, v{w+3}")
        A(f"buffer_store_dwordx4 {vr(P0,4)}, v12, {S(R0)}, s65 offen offset:{512*hf} sc1")
        tg = A(f"buffer_store_dwordx4 {vr(P1,4)}, v12, {S(R0)}, s65 offen offset:{512*hf+128} sc1")
    for hf in range(2):
        for m in range(4):
            unpack(A, 88, 89, 48+8*hf+m); unpack(A, 90, 91, 52+8*hf+m)
            A("v_pk_add_f32 v[84:85], v[84:85], v[88:89]"); A("v_pk_add_f32 v[86:87], v[86:87], v[90:91]")
    A("v_add_f32 v84, v84, v85"); A("v_add_f32 v86, v86, v87")
    A(f"ds_add_f32 v14, v84 offset:{M_CACC}"); A(f"ds_add_f32 v14, v82 offset:{M_CACC+4}")
    A(f"ds_add_f32 v14, v86 offset:{M_CACC+64}"); A(f"ds_add_f32 v14, v83 offset:{M_CACC+68}")
    A.stamp(6, ST)
    A("s_mov_b32 s60, 0x05040100"); A("s_mov_b32 s61, 0x07060302")
    for m in range(4):
        A(f"v_perm_b32 v{72+m}, v{DR+2*m+1}, v{DR+2*m}, s60")
        A(f"v_perm_b32 v{76+m}, v{DR+2*m+1}, v{DR+2*m}, s61")
    A(f"buffer_store_dwordx4 v[72:75], v10, {S(R3)}, s64 offen sc1")
    A(f"buffer_store_dwordx4 v[76:79], v10, {S(R3)}, s64 offen offset:128 sc1")
    A("s_lshl_b32 s60, s9, 4"); A("s_add_u32 s60, s60, s8"); A("s_mul_i32 s60, s60, 1792")
    srd(A, R2, P_WS, WS_CP, 1792, "s60")
    A("s_lshl_b32 s60, s9, 9"); A(f"s_add_u32 s60, s60, {SY_1P:#x}")
    A.wait_vm_tag(tg)
    def cp_final():
        gsignal(A, "s60", 128, 4)
        A("v_add_u32 v9, v3, v4")
        A(f"ds_read_b128 v[88:91], v9 offset:{M_CACC}"); A(f"ds_read_b128 v[92:95], v9 offset:{M_CACC+1024}")
        A(f"buffer_store_dwordx4 v[88:91], v4, {S(R2)}, 0 offen sc1")
        A(f"buffer_store_dwordx4 v[92:95], v4, {S(R2)}, 0 offen offset:1024 sc1")
        A.wait_all()
    arrive(A, C_P, 4, cp_final)
    A("s_lshl_b32 s60, s6, 7"); A(f"s_add_u32 s60, s60, {SY_2:#x}")
    A.wait_all(lg=False)
    arrive(A, C_S2, 8, lambda: gsignal(A, "s60", 1024, 16))
    A.stamp(10, ST)
    A("s_cmp_eq_u32 s3, 7"); A("s_cbranch_scc1 L_help")

K1C, K3C = 0xc0135761, 0xbdd2d3e8
def p4_consts(A):
    A("s_lshr_b32 s70, s9, 2"); A("s_and_b32 s70, s70, 1")
    A("s_and_b32 s71, s9, 3"); A("s_lshr_b32 s60, s9, 3"); A("s_lshl_b32 s60, s60, 2"); A("s_add_u32 s71, s71, s60")
    A("s_mul_i32 s60, s71, 229376"); A("s_mul_i32 s61, s3, 28672"); A("s_add_u32 s60, s60, s61")
    srd(A, R4, P_WS, WS_WDP, 28672, "s60")
    for i in range(1, 7): A(f"s_mov_b32 s{80+i}, {4096*i}")
def wd_load(A, idx):
    so = f"s{80 + idx//4}" if idx >= 4 else "0"
    return A(f"buffer_load_dwordx4 {vr(128+4*idx,4)}, v4, {S(R4)}, {so} offen offset:{1024*(idx%4)} sc1")

def p3_main(A):
    A.label("L_main")
    A.vmq = []; A.lgq = []
    W = 128
    A("s_mul_i32 s68, s9, 7"); A("s_add_u32 s68, s68, s3")
    A("s_lshl_b32 s60, s68, 15")
    srd(A, R0, P_WS, WS_WP, 32768, "s60")
    p4_consts(A)
    A("s_mov_b32 s87, 28672")
    spin(A, F_S1P, 1)
    A.stamp(11, ST)
    for kk in range(32):
        so = f"s{80 + kk//4}" if kk >= 4 else "0"
        A(f"buffer_load_dwordx4 {vr(W+4*kk,4)}, v4, {S(R0)}, {so} offen offset:{1024*(kk%4)} sc1")
    A("s_mul_i32 s60, s9, 16*1792"); A("s_lshl_b32 s61, s3, 8"); A("s_add_u32 s60, s60, s61")
    srd(A, R1, P_WS, WS_CP, 16*1792, "s60")
    A("v_and_b32 v8, 31, v1"); A("v_lshrrev_b32 v9, 5, v1")
    A("v_mul_u32_u24 v10, 8*1792, v9"); A("v_lshl_add_u32 v10, v8, 3, v10")
    A("v_bfe_u32 v11, v1, 2, 2"); A("v_lshl_add_u32 v12, v9, 3, v11"); A("v_lshlrev_b32 v12, 6, v12")
    A("v_and_b32 v13, 16, v1"); A("v_lshl_add_u32 v12, v13, 1, v12")
    A("v_and_b32 v13, 3, v1"); A("v_lshl_add_u32 v12, v13, 3, v12")
    A("v_lshl_add_u32 v14, v8, 4, v3")
    A("v_bfe_u32 v15, v1, 4, 1"); A("v_mul_u32_u24 v15, 57344, v15"); A("v_lshl_add_u32 v15, v9, 8, v15")
    A("v_and_b32 v9, 15, v1"); A("v_lshl_add_u32 v15, v9, 4, v15")
    A("s_mul_i32 s69, s8, 8*57344"); A("s_lshr_b32 s60, s68, 1"); A("s_lshl_b32 s60, s60, 10"); A("s_add_u32 s69, s69, s60")
    A("s_and_b32 s60, s68, 1"); A("s_lshl_b32 s60, s60, 9"); A("s_add_u32 s69, s69, s60")
    srd(A, R2, P_WS, WS_ACT, 128 * 57344)
    A("v_bfe_u32 v108, v1, 4, 1"); A("v_lshl_add_u32 v108, v108, 2, v11"); A("v_lshlrev_b32 v108, 1, v108")
    A("v_lshrrev_b32 v109, 5, v1"); A("v_add_u32 v108, v108, v109"); A("v_lshlrev_b32 v108, 6, v108"); A("v_lshl_add_u32 v108, v13, 3, v108")
    A("s_lshl_b32 s60, s71, 12"); A("s_and_b32 s61, s3, 3"); A("s_lshl_b32 s61, s61, 10"); A("s_add_u32 s60, s60, s61")
    A("s_lshl_b32 s61, s70, 5"); A("s_add_u32 s60, s60, s61"); A("v_add_u32 v108, s60, v108")
    A("v_lshrrev_b32 v109, 4, v1"); A("s_and_b32 s61, s3, 3"); A("s_lshl_b32 s61, s61, 2"); A("v_add_u32 v109, s61, v109")
    A("v_xor_b32 v109, v109, v9"); A("v_lshlrev_b32 v109, 4, v109"); A("v_lshl_add_u32 v109, v9, 8, v109"); A(f"v_add_u32 v109, {RES_OFF:#x}, v109")
    A("s_lshl_b32 s72, s8, 11"); A(f"s_add_u32 s72, s72, {SY_3:#x}")
    A("s_cmp_lt_u32 s3, 4"); A("s_cselect_b32 s73, 1, 0")
    ACC, XR, NR, PF = 16, 32, 8, 4
    def rdx(j, kk):
        f = XR + 4 * (kk % NR); off = (j % 2) * 32768 + kk * 1024
        A(f"ds_read_b64_tr_b16 {vr(f,2)}, v12 offset:{off}")
        A(f"ds_read_b64_tr_b16 {vr(f+2,2)}, v12 offset:{off+256}")
    def prio(n_a, n_b=None):
        A(f"s_setprio {n_a}")
    A.stamp(12, ST)
    A.barrier()
    A.stamp(13, ST)
    for q in range(8):
        A(f"buffer_load_dwordx2 {vr(64+2*q,2)}, v10, {S(R1)}, 0 offen offset:{1792*(q%2)} sc1")
        if q % 2 == 1 and q < 7: A("v_add_u32 v10, 3584, v10")
    Lp = lab("pr")
    A("s_cmp_eq_u32 s73, 0"); A(f"s_cbranch_scc1 {Lp}"); A("s_setprio 2"); A.label(Lp)
    for kk in range(PF): rdx(0, kk)
    tg_act = None
    wd_next = 0
    for j in range(4):
        for kk in range(32):
            if j == 0 and kk + PF in (8, 16, 24): A.raw("s_barrier")
            A(f"v_mfma_f32_32x32x16_bf16 {vr(ACC,16)}, {vr(W+4*kk,4)}, {vr(XR+4*(kk%NR),4)}, {vr(ACC,16) if kk else '0'}")
            if kk + PF < 32: rdx(j, kk + PF)
            if j > 0 and kk == 5: A("s_setprio 2")
            if j > 0 and kk == 14:
                A(f"s_add_u32 s60, s72, {128*(j-1)}")
                A.wait_vm_tag(tg_act)
                arrive(A, C_ACT + 4*(j-1), 7, lambda: gsignal(A, "s60", 512, 4))
            if kk == 20:
                if j == 2: A("v_add_u32 v108, 0x10000, v108")
                A(f"ds_read_b64_tr_b16 v[110:111], v108 offset:{(j%2)*32768}")
            if kk == 24:
                unpack(A, 112, 113, 110); unpack(A, 114, 115, 111)
                A(f"ds_write_b128 v109, v[112:115] offset:{4096*j}")
            if j == 0 and kk == 26:
                for q in (4, 2, 1):
                    for i in range(q): A(f"v_pk_add_f32 {vr(64+2*i,2)}, {vr(64+2*i,2)}, {vr(64+2*i+2*q,2)}")
                A("v_cvt_pk_bf16_f32 v66, v64, v65")
                unpack(A, 68, 69, 66)
                A("v_pk_add_f32 v[64:65], v[64:65], v[68:69] neg_lo:[0,1] neg_hi:[0,1]")
                A("v_cvt_pk_bf16_f32 v67, v64, v65")
                A("s_mov_b32 s60, 0x01000100"); A("s_mov_b32 s61, 0x07060100"); A("s_mov_b32 s62, 0x07060302")
                A("v_perm_b32 v80, v66, v66, s60"); A("v_perm_b32 v81, v66, v67, s61"); A("v_perm_b32 v82, v67, v66, s62"); A("v_mov_b32 v83, 0")
            if j == 3 and kk >= 1 and kk % 2 == 1:
                wd_load(A, wd_next); wd_next += 1
        if j < 3: A.stamp(14 + j, ST)
        spin(A, F_ST, j + 1)
        A(f"ds_read_b128 v[84:87], v14 offset:{M_BF + 512*j}")
        A(f"ds_read_b128 v[88:91], v14 offset:{M_CN + 512*j}")
        A(f"v_mfma_f32_32x32x16_bf16 {vr(ACC,16)}, v[80:83], v[84:87], {vr(ACC,16)}")
        A("s_setprio 0")
        if j < 3:
            if j == 1: A("v_add_u32 v12, 0x10000, v12")
            for kk in range(PF): rdx(j + 1, kk)
        else:
            for _ in range(4):
                wd_load(A, wd_next); wd_next += 1
        for q in range(4):
            g = ACC + 2*q; u = g + 8; T = 92 + 2*(q % 2)
            A(f"v_pk_mul_f32 {vr(T,2)}, {vr(g,2)}, {vr(g,2)}")
            A(f"v_pk_mul_f32 {vr(u,2)}, {vr(u,2)}, {vr(g,2)}")
            A(f"v_pk_fma_f32 {vr(T,2)}, {vr(T,2)}, v[88:89], v[88:89] op_sel:[0,1,0] op_sel_hi:[1,1,0]")
            A(f"v_pk_mul_f32 {vr(T,2)}, {vr(T,2)}, {vr(g,2)}")
            A(f"v_exp_f32 v{T}, v{T}"); A(f"v_exp_f32 v{T+1}, v{T+1}")
            A(f"v_pk_fma_f32 {vr(T,2)}, {vr(T,2)}, v[90:91], v[90:91] op_sel:[0,0,0] op_sel_hi:[1,0,0]")
            A(f"v_rcp_f32 v{T}, v{T}"); A(f"v_rcp_f32 v{T+1}, v{T+1}")
            A(f"v_pk_mul_f32 {vr(u,2)}, {vr(u,2)}, {vr(T,2)}")
        for m in range(4):
            A(f"v_cvt_pk_bf16_f32 v{104+m}, v{ACC+8+m}, v{ACC+12+m}")
        tg_act = A(f"buffer_store_dwordx4 v[104:107], v15, {S(R2)}, s69 offen sc1")
        if j < 3:
            A(f"s_add_u32 s69, s69, {2*57344}")
            A("s_setprio 1")
    A.stamp(17, ST)
    while wd_next < 28:
        wd_load(A, wd_next); wd_next += 1
    A(f"s_add_u32 s60, s72, {128*3}")
    A.wait_vm_tag(tg_act)
    arrive(A, C_ACT + 12, 7, lambda: gsignal(A, "s60", 512, 4))
    A.stamp(18, ST)
    A.raw("s_branch L_p4")
    return A.snapshot()

def p3_help(A):
    A.label("L_help")
    A.vmq = []; A.lgq = []
    A("s_setprio 3")
    p4_consts(A)
    srd(A, R1, P_WS, WS_MODP, 49152)
    A("v_lshlrev_b32 v8, 2, v1"); A("s_lshl_b32 s60, s71, 8"); A(f"s_add_u32 s60, s60, {2560*4}")
    for p in range(4):
        A(f"buffer_load_dword v{64+p}, v8, {S(R1)}, s60 offen sc1")
        if p < 3: A("s_add_u32 s60, s60, 12288")
    A("s_lshl_b32 s60, s9, 9"); A("s_and_b32 s61, s8, 3"); A("s_lshl_b32 s61, s61, 7"); A("s_add_u32 s60, s60, s61"); A(f"s_add_u32 s60, s60, {SY_1P:#x}")
    A("v_mov_b32 v9, s60"); A("v_mov_b32 v10, 16")
    A("s_mov_b64 exec, 1")
    poll(A, "v9", "v10", None)
    A("s_mov_b64 exec, -1")
    A.vmq = []
    set_flag(A, F_S1P, 1)
    A.stamp(11, ST)
    A("v_add_f32 v64, v64, v65"); A("v_add_f32 v66, v66, v67"); A("v_add_f32 v64, v64, v66"); bfround(A, 64)
    A("v_add_u32 v8, v8, v3")
    A(f"ds_write_b32 v8, v64 offset:{M_GB}")
    A("s_lshl_b32 s60, s8, 17")
    srd(A, R0, P_WS, WS_X1B, 131072, "s60")
    A("v_lshrrev_b32 v9, 5, v1"); A("v_bfe_u32 v11, v1, 2, 2"); A("v_lshl_add_u32 v12, v9, 3, v11"); A("v_lshlrev_b32 v12, 6, v12")
    A("v_and_b32 v13, 16, v1"); A("v_lshl_add_u32 v12, v13, 1, v12")
    A("v_and_b32 v13, 3, v1"); A("v_lshl_add_u32 v12, v13, 3, v12")
    A("v_cmp_eq_u32 s[74:75], 1, v13"); A("v_cmp_eq_u32 s[76:77], 2, v13"); A("v_cmp_eq_u32 s[78:79], 3, v13")
    A("v_and_b32 v14, 31, v1"); A("v_lshl_add_u32 v14, v14, 4, v3")
    A("v_mov_b32 v100, 0x3f803f80"); A("v_mov_b32 v101, 0x3f803f80")
    A("s_and_b32 s60, s7, 15"); A("s_lshl_b32 s60, s60, 10"); A(f"s_add_u32 s60, s60, {SY_2:#x}")
    A("v_lshl_add_u32 v9, v1, 7, s60"); A("v_mov_b32 v10, 32")
    A("s_mov_b64 exec, 0xff")
    poll(A, "v9", "v10", None)
    A("s_mov_b64 exec, -1")
    A.stamp(12, ST)
    tags = {}
    def dma(i):
        if i % 4 == 0:
            A(f"s_mov_b32 m0, {1024*i:#x}"); A(f"s_mov_b32 s60, {1024*i:#x}")
        tags[i] = A(f"buffer_load_dwordx4 v4, {S(R0)}, s60 offen offset:{1024*(i%4)} sc1 lds")
    for i in range(56): dma(i)
    for c in range(4):
        A.wait_vm_tag(tags[8*c + 7]); A.raw("s_barrier")
        if c == 0: A.stamp(13, ST)
        for i in range(56 + 2*c, 58 + 2*c): dma(i)
    XR, NR, PF = 32, 8, 4
    def rdx(j, kk):
        f = XR + 4 * (kk % NR); off = (j % 2) * 32768 + kk * 1024
        A(f"ds_read_b64_tr_b16 {vr(f,2)}, v12 offset:{off}")
        A(f"ds_read_b64_tr_b16 {vr(f+2,2)}, v12 offset:{off+256}")
    for j in range(4):
        if j == 2: A("v_add_u32 v12, 0x10000, v12")
        for kk in range(PF): rdx(j, kk)
        for kk in range(32):
            f = XR + 4 * (kk % NR)
            c = (lambda r: vr(r, 4)) if kk else (lambda r: "0")
            A(f"v_mfma_f32_4x4x4_16b_bf16 v[16:19], {vr(f,2)}, {vr(f,2)}, {c(16)}")
            A(f"v_mfma_f32_4x4x4_16b_bf16 v[20:23], v[100:101], {vr(f,2)}, {c(20)}")
            A(f"v_mfma_f32_4x4x4_16b_bf16 v[24:27], {vr(f+2,2)}, {vr(f+2,2)}, {c(24)}")
            A(f"v_mfma_f32_4x4x4_16b_bf16 v[28:31], v[100:101], {vr(f+2,2)}, {c(28)}")
            if kk + PF < 32: rdx(j, kk + PF)
        A("s_mov_b32 s61, 0x05040100"); A("s_mov_b32 s62, 0x07060302")
        A("v_pk_add_f32 v[16:17], v[16:17], v[24:25]"); A("v_pk_add_f32 v[18:19], v[18:19], v[26:27]")
        A("v_add_f32 v64, v20, v28")
        A("v_cndmask_b32 v65, v16, v17, s[74:75]"); A("v_cndmask_b32 v65, v65, v18, s[76:77]"); A("v_cndmask_b32 v65, v65, v19, s[78:79]")
        A("v_mov_b32 v66, v64"); A("v_mov_b32 v67, v65")
        A("v_permlane32_swap_b32 v64, v66"); A("v_permlane32_swap_b32 v65, v67")
        A("v_pk_add_f32 v[64:65], v[64:65], v[66:67]")
        a, B = 64, 68
        A(f"v_mul_f32 v{a}, 0xbb000000, v{a}"); A(f"v_mul_f32 v{a+1}, 0x3b000000, v{a+1}")
        A(f"v_fma_f32 v{a+1}, -v{a}, v{a}, v{a+1}"); A(f"v_max_f32 v{a+1}, 0, v{a+1}")
        A(f"v_add_f32 v{B+6}, 0x3727c5ac, v{a+1}")
        A(f"v_rsq_f32 v{B+8}, v{B+6}"); A(f"v_sqrt_f32 v{a+1}, v{B+6}")
        A(f"v_mul_f32 v{B+4}, {K1C:#x}, v{B+8}"); A(f"v_mul_f32 v{B+9}, v{B+8}, v{B+8}"); A(f"v_mul_f32 v{B+9}, v{B+9}, v{B+8}")
        A(f"v_mul_f32 v{B+5}, {K3C:#x}, v{B+9}"); A(f"v_mov_b32 v{B+7}, 0")
        A(f"v_cvt_pk_bf16_f32 v{B+10}, v{a}, v{a+1}")
        unpack(A, B+12, B+13, B+10)
        A(f"v_pk_add_f32 {vr(a,2)}, {vr(a,2)}, {vr(B+12,2)} neg_lo:[0,1] neg_hi:[0,1]")
        A(f"v_cvt_pk_bf16_f32 v{B+11}, v{a}, v{a+1}")
        A(f"v_perm_b32 v{B}, v{B+11}, v{B+10}, s61"); A(f"v_mov_b32 v{B+1}, v{B+10}"); A(f"v_perm_b32 v{B+2}, v{B+10}, v{B+11}, s62"); A(f"v_mov_b32 v{B+3}, 0")
        A(f"ds_write_b128 v14, {vr(B,4)} offset:{M_BF + 512*j}")
        A(f"ds_write_b128 v14, {vr(B+4,4)} offset:{M_CN + 512*j}")
        if j < 3: A.wait_vm_tag(tags[32*(j+1) + 31])
        set_flag(A, F_ST, j + 1)
        A.stamp(14 + j, ST)
        if j < 2:
            for i in range(64 + 32*j, 96 + 32*j): dma(i)
    A("s_setprio 0")
    for i in range(28): wd_load(A, i)
    A("s_lshl_b32 s60, s8, 11"); A("s_and_b32 s61, s9, 3"); A("s_lshl_b32 s61, s61, 9"); A("s_add_u32 s60, s60, s61"); A(f"s_add_u32 s60, s60, {SY_3:#x}")
    A("v_lshl_add_u32 v9, v1, 7, s60"); A("v_mov_b32 v10, 16")
    for (m, f) in ((3, 2), (4, 3)):
        A(f"s_mov_b64 exec, {m}")
        poll(A, "v9", "v10", None)
        A("s_mov_b64 exec, -1")
        set_flag(A, F_S3, f)
    A.vmq = []
    A.stamp(18, ST)

def p4(A, st_main):
    A.label("L_p4")
    A.restore(st_main)
    A.lgq = []
    A("s_setprio 0")
    A("s_lshl_b32 s60, s8, 3"); A("s_add_u32 s60, s60, s70"); A("s_mul_i32 s60, s60, 57344"); A("s_mul_i32 s61, s3, 7168"); A("s_add_u32 s60, s60, s61")
    srd(A, R0, P_WS, WS_ACT, 7 * 57344, "s60")
    def act_loads(p):
        for k in range(7):
            if k % 4 == 0: A(f"s_mov_b32 s60, {p*2*57344 + k*1024}")
            A(f"buffer_load_dwordx4 {vr(16+28*p+4*k,4)}, v4, {S(R0)}, s60 offen offset:{1024*(k%4)} sc1")
    spin(A, F_S3, 2)
    act_loads(0); act_loads(1)
    A("v_and_b32 v8, 15, v1"); A("v_lshrrev_b32 v11, 4, v1"); A("v_xor_b32 v11, v11, v8")
    A("v_lshlrev_b32 v11, 4, v11"); A("v_lshl_add_u32 v11, v8, 8, v11"); A("s_lshl_b32 s60, s3, 12"); A("v_add_u32 v11, s60, v11")
    A("s_and_b32 s73, s3, 3")
    A("v_bfe_u32 v12, v1, 3, 2"); A("s_lshl_b32 s60, s73, 2"); A("v_add_u32 v12, s60, v12")
    A("v_and_b32 v13, 6, v1"); A("v_lshlrev_b32 v13, 1, v13"); A("v_and_b32 v14, 1, v1"); A("v_add_u32 v13, v13, v14")
    A("v_lshrrev_b32 v15, 5, v1"); A("v_lshl_add_u32 v13, v15, 1, v13")
    A("v_xor_b32 v13, v13, v12"); A("v_lshlrev_b32 v13, 4, v13"); A("v_lshl_add_u32 v13, v12, 8, v13")
    A("v_and_b32 v14, 7, v1")
    A("v_lshlrev_b32 v12, 10, v12"); A("v_lshl_add_u32 v12, v14, 4, v12"); A("v_lshl_add_u32 v12, v15, 3, v12")
    A("v_lshlrev_b32 v14, 5, v14"); A("v_lshl_add_u32 v14, v15, 2, v14"); A("v_add_u32 v14, v14, v3")
    A("s_lshl_b32 s74, s8, 17"); A("s_lshl_b32 s60, s70, 14"); A("s_add_u32 s74, s74, s60"); A("s_lshl_b32 s60, s71, 7"); A("s_add_u32 s74, s74, s60")
    srd(A, R1, P_OUT, 0, 0x200000)
    spin(A, F_S3, 3)
    act_loads(2)
    A.stamp(19, ST)
    ACC = 240
    for p in range(4):
        if p == 3:
            Lw = lab("p3")
            A("s_cmp_lg_u32 s3, 7"); A(f"s_cbranch_scc1 {Lw}")
            st = A.snapshot()
            A("s_mov_b64 exec, 8")
            poll(A, "v9", "v10", None)
            A("s_mov_b64 exec, -1")
            set_flag(A, F_S3, 4)
            A.restore(st)
            A.label(Lw)
            spin(A, F_S3, 4)
            A.stamp(22, ST)
            act_loads(3)
        for k in range(7):
            for dt in range(4):
                A(f"v_mfma_f32_16x16x32_bf16 {vr(ACC+4*dt,4)}, {vr(128+16*k+4*dt,4)}, {vr(16+28*p+4*k,4)}, {vr(ACC+4*dt,4) if k else '0'}")
        if p == 2: A("v_add_u32 v11, 0x10000, v11")
        for dt in range(4):
            if dt: A(f"v_xor_b32 v8, {64*dt}, v11")
            A(f"ds_write_b128 {'v8' if dt else 'v11'}, {vr(ACC+4*dt,4)} offset:{(p%2)*32768}")
        A.barrier()
        if p in (0, 2): A.stamp(20 + p//2, ST)
        if p == 3: A.stamp(23, ST)
        Lr = lab("rd")
        A("s_cmp_lt_u32 s3, 4"); A(f"s_cbranch_scc{'0' if p % 2 == 0 else '1'} {Lr}")
        st = A.snapshot()
        T = 16
        A(f"v_add_u32 v8, {p*32768:#x}, v13"); A(f"v_add_u32 v15, {RES_OFF + p*4096:#x}, v13")
        for w in range(5): A(f"ds_read_b128 {vr(T+4*w,4)}, v8 offset:{4096*w}")
        A(f"ds_read2_b32 v[36:37], v14 offset0:{M_GB//4} offset1:{M_GB//4+2}")
        A(f"ds_read2_b32 v[38:39], v14 offset0:{M_GB//4+4} offset1:{M_GB//4+6}")
        A("ds_read_b128 v[40:43], v15")
        for w in (1, 2, 3):
            A(f"v_pk_add_f32 {vr(T,2)}, {vr(T,2)}, {vr(T+4*w,2)}"); A(f"v_pk_add_f32 {vr(T+2,2)}, {vr(T+2,2)}, {vr(T+4*w+2,2)}")
            A(f"ds_read_b128 {vr(T+4*w,4)}, v8 offset:{4096*(w+4)}")
        for w in (4, 1, 2, 3):
            A(f"v_pk_add_f32 {vr(T,2)}, {vr(T,2)}, {vr(T+4*w,2)}"); A(f"v_pk_add_f32 {vr(T+2,2)}, {vr(T+2,2)}, {vr(T+4*w+2,2)}")
        A(f"v_pk_fma_f32 {vr(T,2)}, {vr(T,2)}, v[36:37], v[40:41]"); A(f"v_pk_fma_f32 {vr(T+2,2)}, {vr(T+2,2)}, v[38:39], v[42:43]")
        A(f"v_permlane32_swap_b32 v{T}, v{T+2}"); A(f"v_permlane32_swap_b32 v{T+1}, v{T+3}")
        A(f"v_cvt_pk_bf16_f32 v{T+4}, v{T}, v{T+2}"); A(f"v_cvt_pk_bf16_f32 v{T+5}, v{T+1}, v{T+3}")
        A(f"s_add_u32 s60, s74, {p*32768}")
        A(f"buffer_store_dwordx2 {vr(T+4,2)}, v12, {S(R1)}, s60 offen")
        A.restore(st)
        A.label(Lr)
    A.stamp(24, ST)
    if Asm.stamps_on: A.raw("s_waitcnt vmcnt(0)")
    A.stamp(25, ST)
    A.stamp_flush(ST, 6, 4, 0, "s3")

def kernel():
    A = Asm()
    prologue(A)
    A("s_cmp_ge_u32 s3, 4"); A("s_cbranch_scc1 L_b")
    st0 = A.snapshot()
    role_a(A)
    A.label("L_b")
    A.restore(st0)
    role_b(A)
    stm = p3_main(A)
    p3_help(A)
    p4(A, stm)
    A.label("L_end")
    A.raw("s_endpgm")
    return A.finish()

def build(path):
    ref = open("cdna_kernels/%s.s.ref" % NAME).read()
    head = [l for l in ref.splitlines() if l.startswith(";") and "@launch" not in l]
    nm = NAME + "_kernel"
    out = list(head)
    out.append(f"; @launch grid=(256,1,1) block=(512,1,1) lds={LDS_SIZE}")
    out.append('.amdgcn_target "amdgcn-amd-amdhsa--gfx950"')
    body = kernel()
    txt = "\n".join(out) + f"\n.text\n.globl {nm}\n.p2align 8\n.type {nm},@function\n{nm}:\n{body}\n" + f""".section .rodata,"a"
.p2align 6
.amdhsa_kernel {nm}
  .amdhsa_next_free_vgpr 256
  .amdhsa_next_free_sgpr 102
  .amdhsa_accum_offset 256
  .amdhsa_group_segment_fixed_size 0
  .amdhsa_kernarg_size 120
  .amdhsa_user_sgpr_count 2
  .amdhsa_user_sgpr_kernarg_segment_ptr 1
  .amdhsa_system_sgpr_workgroup_id_x 1
  .amdhsa_float_denorm_mode_32 3
.end_amdhsa_kernel
"""
    open(path, "w").write(txt)

def check_ws(wsb, R, rep, bf, torch, np):
    g = lambda off, n, dt=np.uint16: wsb[off:off + n].view(dt)
    f32 = lambda off, n: torch.from_numpy(g(off, n, np.float32).copy())
    print("sync 1A", g(SY_1A, 64*128, np.uint32)[::32].tolist())
    print("sync 1B", g(SY_1B, 128*128, np.uint32)[::32][:16].tolist(), "1P", g(SY_1P, 64*128, np.uint32)[::32][:16].tolist())
    print("sync 2", g(SY_2, 128*128, np.uint32)[::32][:16].tolist(), "3", g(SY_3, 256*128, np.uint32)[::32][:32].tolist())
    mod = f32(WS_MODP, 49152).reshape(4, 3072).sum(0).bfloat16().float()
    mod[512:1024] = (mod[512:1024] + 1).bfloat16().float(); mod[2048:2560] = (mod[2048:2560] + 1).bfloat16().float()
    rep("mod", mod, R["mod1"])
    ut = bf(g(WS_UT, 512 * UT_PITCH)).reshape(512, UT_PITCH // 2)
    rep("ut", ut[:, :2048].flip(1).T, R["u"]); print("ut pad", ut[:, 2048:2080].abs().max().item())
    xt = bf(g(WS_XT, 0x200000)).reshape(512, 2048); rep("xt", xt.T, R["x"])
    st = f32(WS_ST1, 16384).reshape(2048, 2); rep("xn", R["x"] * st[:, :1] + st[:, 1:], R["xn"])
    x1 = bf(g(WS_X1B, 0x200000)).reshape(64, 512, 32).permute(0, 2, 1).reshape(2048, 512); rep("x1", x1, R["x1"])
    wp = bf(g(WS_WP, 112 * 32768)).reshape(112, 32, 2, 32, 8)
    rho = torch.arange(32); fl = 2 * (rho % 8) + (rho // 8) % 2; mt = rho // 16
    cb1 = R["mod1"][2048:2560]; sb = R["mod1"][1536:2048]
    W2 = torch.stack([R["wg"], R["wu"]])
    Wsel = W2[mt[None, :], :, (16 * torch.arange(112)[:, None] + fl[None, :])]
    wexp = (Wsel * cb1).bfloat16().float()
    rep("wp", wp.permute(0, 3, 1, 2, 4).reshape(112, 32, 512), wexp)
    cp = f32(WS_CP, 256 * 1792).reshape(16, 16, 224, 2).sum(1).reshape(112, 32, 2)
    rep("c1", cp[..., 0], wexp.sum(-1)); rep("c2", cp[..., 1], (Wsel * sb).sum(-1))
    wdp = bf(g(WS_WDP, 8 * 229376)).reshape(8, 56, 4, 4, 16, 8)
    i = torch.arange(16); dl = 2 * (i % 8) + i // 8
    wd = R["wd"].reshape(56, 4, 8, 8, 4, 16)[..., dl]
    rep("wdp", wdp.permute(1, 3, 5, 0, 2, 4), wd)
    act = bf(g(WS_ACT, 128 * 57344)).reshape(128, 56, 4, 16, 8)
    rep("act", act.permute(0, 3, 1, 2, 4).reshape(2048, 1792), R["act"])

if __name__ == "__main__":
    p = sys.argv[1] if len(sys.argv) > 1 else "cdna_kernels/%s.s" % NAME
    if "stamp" in p:
        Asm.stamps_on = True; Asm.clock_ids = (0, 13, 17, 25)
    build(p)
    print("written", p, "ws end", hex(WS_END), "lds", LDS_SIZE)
```

```python
import re, copy

REG_RE = re.compile(r"(?<![\w.])([vsa])(?:\[(\d+):(\d+)\]|(\d+))(?![\w])")

def regs_of(tok):
    out = set()
    t = tok.strip()
    for m in REG_RE.finditer(t):
        k = m.group(1)
        if m.group(2) is not None:
            for i in range(int(m.group(2)), int(m.group(3)) + 1):
                out.add((k, i))
        else:
            out.add((k, int(m.group(4))))
    if re.search(r"\bvcc(_lo|_hi)?\b", t): out.add(("x", "vcc"))
    if re.search(r"\bexec(_lo|_hi)?\b", t): out.add(("x", "exec"))
    if re.search(r"\bm0\b", t): out.add(("x", "m0"))
    return out

def split_ops(s):
    ops, depth, cur = [], 0, ""
    for ch in s:
        if ch in "[(": depth += 1
        if ch in "])": depth -= 1
        if ch == "," and depth == 0:
            ops.append(cur.strip()); cur = ""
        else:
            cur += ch
    if cur.strip(): ops.append(cur.strip())
    return ops

TRANS = ("v_exp_f32", "v_log_f32", "v_rcp_f32", "v_rsq_f32", "v_sqrt_f32", "v_sin_f32", "v_cos_f32", "v_rcp_iflag_f32")
NO_DST_S = ("s_cmp", "s_waitcnt", "s_barrier", "s_nop", "s_branch", "s_cbranch", "s_setprio", "s_endpgm", "s_sleep", "s_bitcmp")

class Ins:
    __slots__ = ("text", "op", "rd", "wr", "cls", "srcC", "srcAB", "passes", "wide_store", "dpp", "is_label", "lds_dma", "sdata")
    def __init__(self, text):
        self.text = text
        self.is_label = text.endswith(":")
        self.rd, self.wr = set(), set()
        self.cls = "other"
        self.srcC, self.srcAB, self.passes = set(), set(), 0
        self.wide_store, self.dpp, self.lds_dma = False, False, False
        self.sdata = set()
        if self.is_label or text.startswith(".") or text.startswith(";"):
            self.op = ""
            self.cls = "pseudo"
            return
        parts = text.split(None, 1)
        op = self.op = parts[0]
        base = re.sub(r"_(e32|e64|dpp|sdwa)$", "", op)
        rest = parts[1] if len(parts) > 1 else ""
        ops = split_ops(rest)
        R = [regs_of(o.split(" ")[0]) if not o.startswith("abs(") and not o.startswith("-") else regs_of(o) for o in ops]
        allr = lambda lst: set().union(*lst) if lst else set()
        if base.startswith("v_mfma"):
            self.cls = "mfma"
            self.wr = R[0]; self.srcAB = R[1] | R[2]; self.srcC = R[3]; self.rd = self.srcAB | self.srcC
            if "32x32x16" in base or "32x32x8" in base: self.passes = 8
            elif "16x16x32" in base or "16x16x16" in base: self.passes = 4
            elif "4x4x4" in base: self.passes = 2
            else: raise ValueError("unknown mfma " + op)
        elif base.startswith("v_"):
            self.cls = "valu"
            self.dpp = ("quad_perm" in rest or "row_" in rest or "wave_" in rest or op.endswith("_dpp"))
            if base.startswith("v_cmpx"):
                self.wr = R[0] | {("x", "exec")}; self.rd = allr(R[1:])
            elif base.startswith("v_cmp"):
                self.wr = R[0]; self.rd = allr(R[1:])
            elif base in ("v_add_co_u32", "v_sub_co_u32", "v_subrev_co_u32"):
                self.wr = R[0] | R[1]; self.rd = allr(R[2:])
            elif base in ("v_addc_co_u32", "v_subb_co_u32"):
                self.wr = R[0] | R[1]; self.rd = allr(R[2:])
            elif base.startswith("v_permlane") and "swap" in base:
                self.wr = R[0] | R[1]; self.rd = R[0] | R[1]
            elif base == "v_nop":
                pass
            else:
                self.wr = R[0]; self.rd = allr(R[1:])
                if base.startswith(("v_fmac", "v_mac", "v_dot2c", "v_pk_fmac", "v_writelane")) or self.dpp:
                    self.rd |= R[0]
            if base in TRANS: self.cls = "trans"
            if base.startswith("v_dot"): self.cls = "dot"
        elif base.startswith("ds_"):
            self.cls = "ds"
            if base.startswith(("ds_read", "ds_bpermute", "ds_permute", "ds_swizzle")) or "_rtn" in base:
                self.wr = R[0]; self.rd = allr(R[1:])
            else:
                self.rd = allr(R)
        elif base.startswith("buffer_"):
            self.cls = "vmem"
            words = rest.replace(",", " ").split()
            if base.startswith("buffer_load"):
                if "lds" in words:
                    self.lds_dma = True
                    self.rd = allr(R) | {("x", "m0")}
                else:
                    self.wr = R[0]; self.rd = allr(R[1:])
            elif base.startswith("buffer_store"):
                self.rd = allr(R); self.sdata = R[0]
                self.wide_store = base.endswith(("x3", "x4"))
            elif base.startswith("buffer_atomic"):
                self.rd = allr(R)
                if "sc0" in words: self.wr = R[0]
            elif base.startswith(("buffer_inv", "buffer_wbl2")):
                pass
            else:
                raise ValueError(op)
        elif base.startswith("global_"):
            self.cls = "vmem"
            words = rest.replace(",", " ").split()
            if base.startswith("global_load_lds"):
                self.lds_dma = True; self.rd = allr(R) | {("x", "m0")}
            elif base.startswith("global_load"):
                self.wr = R[0]; self.rd = allr(R[1:])
            elif base.startswith("global_store"):
                self.rd = allr(R); self.sdata = R[1]
                self.wide_store = base.endswith(("x3", "x4"))
            elif base.startswith("global_atomic"):
                if "sc0" in words and len(ops) == 4:
                    self.wr = R[0]; self.rd = allr(R[1:])
                else:
                    self.rd = allr(R)
            else:
                raise ValueError(op)
        elif base.startswith(("s_load", "s_buffer_load", "s_memtime", "s_memrealtime")):
            self.cls = "smem"
            self.wr = R[0]; self.rd = allr(R[1:])
        elif base.startswith("s_"):
            self.cls = "salu"
            if base.startswith(NO_DST_S):
                self.rd = allr(R)
            else:
                self.wr = R[0] if R else set(); self.rd = allr(R[1:])
                if "saveexec" in base:
                    self.wr = self.wr | {("x", "exec")}; self.rd |= {("x", "exec")}
                if base.startswith(("s_addk", "s_mulk", "s_cmov", "s_bitset")):
                    self.rd |= R[0]
        else:
            raise ValueError("unknown op: " + text)

    def states(self):
        if self.cls == "pseudo": return 0
        if self.op == "s_nop": return int(self.text.split()[1], 0) + 1
        return 1

def isv(r): return r[0] in ("v", "a")
def iss(r): return r[0] == "s" or r == ("x", "vcc")

def required_gap(p, c):
    need = 0
    pv = p.cls in ("valu", "trans", "dot")
    cv = c.cls in ("valu", "trans", "dot")
    pw_v = {r for r in p.wr if isv(r)}
    pw_s = {r for r in p.wr if iss(r)}
    if pv:
        if c.cls == "mfma" and (pw_v & c.rd): need = max(need, 2)
        if c.cls == "mfma" and ("x", "exec") in p.wr: need = max(need, 4)
        if cv and c.dpp and (pw_v & c.rd): need = max(need, 2)
        if cv and c.dpp and ("x", "exec") in p.wr: need = max(need, 5)
        if c.op.startswith("v_permlane") and (pw_v & c.rd): need = max(need, 2)
        if c.op.startswith(("v_permlane", "v_readlane", "v_readfirstlane", "v_writelane")) and ("x", "exec") in p.wr: need = max(need, 4)
        if c.op.startswith(("v_readlane", "v_readfirstlane")) and (pw_v & c.rd): need = max(need, 1)
        if c.cls == "vmem" and (pw_s & c.rd): need = max(need, 5)
        if cv and (pw_s & c.rd):
            need = max(need, 4 if c.op.startswith(("v_readlane", "v_writelane")) else 2)
        if p.cls == "trans" and cv and c.cls != "trans" and (pw_v & c.rd): need = max(need, 1)
        if p.cls == "trans" and c.cls == "trans" and (pw_v & c.rd): need = max(need, 1)
        if p.cls == "dot" and (pw_v & (c.rd | c.wr)):
            same = c.op == p.op
            need = max(need, 0 if (same and not (pw_v & _dot_ab(c))) else 3)
        if ("op_sel" in p.text or "sdwa" in p.text) and not p.op.startswith("v_pk_") and cv and (pw_v & (c.rd | c.wr)): need = max(need, 1)
    if p.cls == "salu" and ("x", "m0") in p.wr and (c.lds_dma or "addtid" in c.op): need = max(need, 1)
    if p.cls == "vmem" and p.wide_store and (p.sdata & c.wr): need = max(need, 2 if cv else 1)
    if p.cls == "mfma":
        n = p.passes
        D = p.wr
        if c.cls == "mfma":
            if D & c.srcAB: need = max(need, n + 4)
            if D & c.srcC:
                if not (D == c.srcC and c.passes == n): need = max(need, n + 2)
                elif n == 2: need = max(need, 2)
            elif D & c.wr:
                need = max(need, n + 4)
        elif cv:
            if D & (c.rd | c.wr): need = max(need, n + 4)
            if p.srcC & c.wr: need = max(need, n - 1)
        elif c.cls in ("vmem", "ds"):
            if D & (c.rd | c.wr): need = max(need, n + 4)
            if p.srcC & c.wr: need = max(need, n - 1)
    return need

def _dot_ab(c):
    ops = split_ops(c.text.split(None, 1)[1])
    return regs_of(ops[1]) | regs_of(ops[2])

class Asm:
    def __init__(self):
        self.ins = []
        self.vmq = []
        self.lgq = []
        self.seq = 0
        self.nvm = 0
    def snapshot(self): return (list(self.vmq), list(self.lgq))
    def restore(self, st): self.vmq, self.lgq = list(st[0]), list(st[1])
    def raw(self, text):
        self.ins.append(Ins(text))
    def label(self, name): self.raw(name + ":")
    def comment(self, s): self.raw("; " + s)
    def _wait(self, vm=None, lg=None):
        parts = []
        if vm is not None:
            vm = min(vm, 63)
            if len(self.vmq) > vm:
                parts.append(f"vmcnt({vm})"); self.vmq = self.vmq[len(self.vmq) - vm:] if vm else []
        if lg is not None:
            lg = min(lg, 15)
            if any(x[2] for x in self.lgq): lg = 0
            if len(self.lgq) > lg:
                parts.append(f"lgkmcnt({lg})"); self.lgq = self.lgq[len(self.lgq) - lg:] if lg else []
        if parts: self.raw("s_waitcnt " + " ".join(parts))
    def mark_vm(self, regs):
        self.seq += 1
        self.vmq.append((self.seq, {("v", r) for r in regs}))
        return self.seq
    def wait_vm_tag(self, tag):
        n = sum(1 for x in self.vmq if x[0] > tag)
        self._wait(vm=n)
    def wait_lg_tag(self, tag):
        n = sum(1 for x in self.lgq if x[0] > tag)
        self._wait(lg=n)
    def wait_all(self, vm=True, lg=True):
        self._wait(vm=0 if vm else None, lg=0 if lg else None)
    def __call__(self, text):
        text = text.strip()
        if ";" in text and not text.startswith(";"): text = text.split(";")[0].strip()
        I = Ins(text)
        touched = I.rd | I.wr
        vm = lg = None
        for idx, (s, d) in enumerate(self.vmq):
            if d & touched: vm = len(self.vmq) - 1 - idx
        for idx, (s, d, sm) in enumerate(self.lgq):
            if d & touched: lg = len(self.lgq) - 1 - idx
        if vm is not None or lg is not None: self._wait(vm, lg)
        self.ins.append(I)
        self.seq += 1
        if I.cls == "vmem":
            self.vmq.append((self.seq, set(I.wr)))
            if len(self.vmq) > 64: self.vmq = self.vmq[-64:]
        elif I.cls == "ds":
            self.lgq.append((self.seq, set(I.wr), False))
        elif I.cls == "smem":
            self.lgq.append((self.seq, set(I.wr), True))
        return self.seq
    stamps_on = False
    clock_ids = (0, 2, 3, 7)
    def stamp(self, i, vreg):
        if not Asm.stamps_on: return
        self.raw("s_memrealtime vcc")
        self.raw("s_waitcnt lgkmcnt(0)"); self.lgq = []
        self.raw(f"v_writelane_b32 v{vreg}, vcc_lo, {i}")
        if i in Asm.clock_ids:
            self.raw("s_memtime vcc")
            self.raw("s_waitcnt lgkmcnt(0)")
            self.raw(f"v_writelane_b32 v{vreg}, vcc_lo, {32 + i}")
    def stampval(self, i, vreg, sreg):
        if not Asm.stamps_on: return
        self.raw(f"v_writelane_b32 v{vreg}, {sreg}, {i}")
    def stamp_flush(self, vreg, tmp, wsptr, kidx, wave_s, off=0x8000000):
        if not Asm.stamps_on: return
        self.raw("s_mov_b64 exec, -1")
        self.raw(f"s_lshl_b32 s60, s2, 3"); self.raw(f"s_add_u32 s60, s60, {wave_s}"); self.raw("s_lshl_b32 s60, s60, 8")
        self.raw(f"s_add_u32 s60, s60, {off + kidx * 256 * 8 * 256:#x}")
        self.raw(f"v_mbcnt_lo_u32_b32 v{tmp}, -1, 0"); self.raw(f"v_mbcnt_hi_u32_b32 v{tmp}, -1, v{tmp}")
        self.raw(f"v_lshl_add_u32 v{tmp}, v{tmp}, 2, s60")
        self.raw(f"global_store_dword v{tmp}, v{vreg}, s[{wsptr}:{wsptr+1}]")
    def barrier(self):
        self._wait(lg=0)
        self.raw("s_barrier")
    def finish(self):
        out = []
        for I in self.ins:
            if I.cls != "pseudo":
                need = 0; dist = 0
                for P in reversed(out):
                    if dist >= 20: break
                    g = required_gap(P, I) if P.cls != "pseudo" else 0
                    if g - dist > need: need = g - dist
                    dist += P.states()
                while need > 0:
                    k = min(need, 16)
                    out.append(Ins(f"s_nop {k-1}")); need -= k
            out.append(I)
        self.ins = out
        return "\n".join((x.text if x.is_label else "    " + x.text) for x in out)

def vr(a, n=1): return f"v{a}" if n == 1 else f"v[{a}:{a+n-1}]"
def sr(a, n=1): return f"s{a}" if n == 1 else f"s[{a}:{a+n-1}]"
```

```python
import sys, os
OPT = dict(x.split('=') for x in os.environ.get('OPT', '').split(',') if x)
sys.path.insert(0, "tools")
from gasm import Asm, vr, sr

NAME = "adaLN_cond__ssm_conv_h3__geglu_ffn__prompt"
UT_PITCH = 4224
WS_UT = 0
WS_XT = 0x210000
WS_ST1 = WS_XT + 0x200000
WS_MODP = WS_ST1 + 0x4000
WS_X1B = WS_MODP + 0xC000
WS_WP = WS_X1B + 0x200000
WS_CP = WS_WP + 112 * 32768
WS_WDP = WS_CP + 256 * 1792
WS_ACT = WS_WDP + 8 * 229376
WS_SYNC = WS_ACT + 128 * 57344
SY_E = WS_SYNC
SY_1A = WS_SYNC + 4096
SY_1B = SY_1A + 32 * 128
SY_1P = SY_1B + 128 * 128
SY_3 = SY_1P + 64 * 128
SY_1M = SY_3 + 256 * 128
SY_2 = SY_1M + 64 * 128
SY_W = SY_2 + 128 * 128
WS_END = SY_W + 128 * 128

CH_SZ = 25856; H_SZ = 16640; U1_OFF = H_SZ; U0_OFF = H_SZ + 4544 + 32
EX_OFF = 2 * CH_SZ
STG_K, STG_V, STG_X = 69632, 69632 + 9216, 69632 + 9216 + 8192
RES_OFF = 131072
MISC = RES_OFF + 16384
M_GB, M_BF, M_CN, M_CACC, M_MODL = 256, 512, 2560, 4608, 6656
LDS_SIZE = MISC + 10752
C_P1A, C_P1B, C_MOD, F_S1A, F_S1B, C_FILL, C_EX, C_P, F_S1P, C_S2, F_ST, C_ACT, F_S3, F_T2, F_SW, F_S1M, F_GO, C_EL, C_ST = 0, 4, 8, 12, 16, 20, 28, 36, 40, 44, 48, 52, 68, 72, 80, 84, 88, 92, 96
SPIN_MAX = 100000
DPP = "row_mask:0xf bank_mask:0xf"
R0, R1, R2, R3, R4 = 40, 44, 48, 52, 56
P_Q, P_K, P_V, P_SH, P_H, P_D, P_WG, P_WU, P_WD, P_C, P_WM, P_OUT, P_DBG, P_WS = 16, 18, 20, 22, 24, 26, 30, 32, 34, 36, 38, 12, 14, 4
ST = 2

STAMP_NAMES = {0: "start", 1: "init barrier", 2: "A: UT stored / B: mod done", 3: "A: S1A arrived / B: S1B arrived", 4: "S1A seen", 5: "A: u landed / B: S1M seen",
  6: "A: fill sync / B: W' stored", 7: "A: mfma done / B: W' stores issued", 8: "A: exchange / B: S1P arrived", 9: "x1 stored", 10: "S2 arrived", 11: "S1P seen", 12: "main: W' issued / help: S2 seen", 13: "B0",
  14: "M0 / F0", 15: "M1 / F1", 16: "M2 / F2", 17: "E3 done / F3", 18: "act3 arrived / S3(0-2) seen", 19: "act0-2 issued", 20: "p0 barrier", 21: "p2 barrier", 22: "S3(3) seen", 23: "p3 barrier", 24: "done", 25: "drained", 28: "k,v staged", 29: "S1B seen", 26: "A: S1B arrived", 27: "A: h landed / B: W landed"}
_lab = [0]
def lab(p):
    _lab[0] += 1
    return f"L{p}_{_lab[0]}"

def srd(A, s, ptr, off, size, extra=None):
    if off:
        A(f"s_add_u32 s{s}, s{ptr}, {off:#x}"); A(f"s_addc_u32 s{s+1}, s{ptr+1}, 0")
        if extra is not None:
            A(f"s_add_u32 s{s}, s{s}, {extra}"); A(f"s_addc_u32 s{s+1}, s{s+1}, 0")
    elif extra is not None:
        A(f"s_add_u32 s{s}, s{ptr}, {extra}"); A(f"s_addc_u32 s{s+1}, s{ptr+1}, 0")
    else:
        A(f"s_mov_b32 s{s}, s{ptr}"); A(f"s_mov_b32 s{s+1}, s{ptr+1}")
    A(f"s_mov_b32 s{s+2}, {size if isinstance(size, str) else hex(size)}")
    A(f"s_mov_b32 s{s+3}, 0x20000")
def S(r): return f"s[{r}:{r+3}]"

def spin(A, off, target, addr="v3"):
    L = lab("sp"); D = lab("sd")
    A.raw("s_mov_b32 s66, 0")
    A.lgq = []
    A.label(L)
    A.raw(f"ds_read_b32 v6, {addr} offset:{off}")
    A.raw("s_add_u32 s66, s66, 1")
    A.raw(f"s_cmp_gt_u32 s66, {8*SPIN_MAX}")
    A.raw("s_waitcnt lgkmcnt(0)")
    A.raw(f"s_cbranch_scc1 {D}")
    A.raw("v_readfirstlane_b32 s11, v6")
    A.raw(f"s_cmp_ge_u32 s11, {target}")
    A.raw(f"s_cbranch_scc0 {L}")
    A.label(D)

def set_flag(A, off, val):
    A(f"v_mov_b32 v6, {val}")
    A(f"ds_write_b32 v3, v6 offset:{off}")

def arrive(A, off, n, last_fn, addr="v3"):
    L = lab("ar")
    A("s_mov_b64 exec, 1")
    A(f"ds_add_rtn_u32 v6, {addr}, v5 offset:{off}")
    A("s_mov_b64 exec, -1")
    if last_fn is None: return
    A("v_readfirstlane_b32 s11, v6")
    A(f"s_cmp_lg_u32 s11, {n-1}")
    A(f"s_cbranch_scc1 {L}")
    st = A.snapshot()
    last_fn()
    A.restore(st)
    A.label(L)

def gsignal(A, base_s, stride, nrep):
    A(f"v_mul_u32_u24 v7, {stride}, v1")
    A(f"v_add_u32 v7, {base_s}, v7")
    A("v_mov_b32 v6, s100")
    A(f"s_mov_b64 exec, {(1 << nrep) - 1:#x}")
    A("global_atomic_swap v7, v6, s[4:5] sc1" if OPT.get("sig", "swap") == "swap" else "global_store_dword v7, v6, s[4:5] sc1")
    A("s_mov_b64 exec, -1")

def gcount(A, base):
    A("s_lshl_b32 s60, s6, 7"); A(f"s_add_u32 s60, s60, {base:#x}")
    A("v_lshlrev_b32 v7, 10, v1"); A("v_add_u32 v7, s60, v7")
    A("s_mov_b64 exec, 0xffff")
    A("global_atomic_add v7, v5, s[4:5] sc1")
    A("s_mov_b64 exec, -1")
def s1b_sig(A):
    if OPT.get("d1"): A.stamp(30, ST)
    gcount(A, SY_1B)
    if OPT.get("d1") and Asm.stamps_on:
        A.raw("s_waitcnt vmcnt(0)"); A.stamp(31, ST)
def sbase(A, off_s):
    A(f"s_add_u32 s62, s4, {off_s}"); A("s_addc_u32 s63, s5, 0")
def sp_issue(A, loads):
    for (dst, n, off) in loads:
        A.raw(f"s_load_dword{'x%d' % n if n > 1 else ''} {sr(dst, n)}, s[62:63], {off} glc")
def sp_check(A, loads, want, miss):
    for (dst, n, off) in loads:
        if want is None:
            for i in range(0, n, 2):
                A.raw(f"s_cmp_eq_u64 {sr(dst+i,2)}, s[100:101]"); A.raw(f"s_cbranch_scc0 {miss}")
        else:
            for i in range(n):
                A.raw(f"s_cmp_eq_u32 s{dst+i}, {want}"); A.raw(f"s_cbranch_scc0 {miss}")
def spoll(A, loads, want=None, issued=False):
    L, C, D = lab("po"), lab("pc"), lab("pd")
    A.raw("s_mov_b32 s11, 0")
    if issued: A.raw(f"s_branch {C}")
    A.label(L)
    A.raw("s_add_u32 s11, s11, 1")
    A.raw(f"s_cmp_gt_u32 s11, {SPIN_MAX}")
    A.raw(f"s_cbranch_scc1 {D}")
    if OPT.get("psleep"): A.raw(f"s_sleep {OPT['psleep']}")
    sp_issue(A, loads)
    A.label(C)
    A.raw("s_waitcnt lgkmcnt(0)"); A.lgq = []
    sp_check(A, loads, want, L)
    A.label(D)
CNT_LOADS = lambda r: [(r + q, 1, 128 * q) for q in range(8)]
def cbase(A, base):
    A("s_and_b32 s60, s7, 15"); A("s_lshl_b32 s60, s60, 10"); A(f"s_add_u32 s60, s60, {base:#x}")
    sbase(A, "s60")
def cpoll(A, base):
    cbase(A, base)
    spoll(A, CNT_LOADS(16), want=32)

def wslot(A, base):
    if OPT.get("lay") == "b":
        A("s_lshl_b32 s60, s2, 2")
    else:
        A("s_lshl_b32 s60, s6, 7"); A("s_lshl_b32 s61, s7, 2"); A("s_add_u32 s60, s60, s61")
    A(f"s_add_u32 s60, s60, {base:#x}")
def unpack(A, lo, hi, src):
    A(f"v_lshlrev_b32 v{lo}, 16, v{src}"); A(f"v_and_b32 v{hi}, s10, v{src}")
def bfround(A, r):
    A(f"v_cvt_pk_bf16_f32 v{r}, v{r}, v{r}"); A(f"v_and_b32 v{r}, s10, v{r}")

def get_tag(A):
    A("v_readfirstlane_b32 s100, v127")
    A("s_add_u32 s100, s100, 0x9e3779b9"); A("s_mov_b32 s101, s100")

def prologue(A):
    A("s_cmp_ge_u32 s2, 256"); A("s_cbranch_scc1 L_end")
    A("s_load_dwordx16 s[16:31], s[0:1], 0")
    A("s_load_dwordx8 s[32:39], s[0:1], 64")
    A("s_load_dwordx4 s[12:15], s[0:1], 96")
    A("s_load_dwordx2 s[4:5], s[0:1], 112")
    A("v_lshrrev_b32 v2, 6, v0"); A("v_and_b32 v1, 63, v0")
    A("v_readfirstlane_b32 s3, v2")
    A("s_and_b32 s6, s2, 7"); A("s_lshr_b32 s7, s2, 3")
    A("s_and_b32 s8, s6, 1"); A("s_lshl_b32 s8, s8, 3"); A("s_and_b32 s60, s7, 7"); A("s_add_u32 s8, s8, s60")
    A("s_lshr_b32 s9, s6, 1"); A("s_lshl_b32 s9, s9, 2"); A("s_lshr_b32 s60, s7, 3"); A("s_add_u32 s9, s9, s60")
    A("s_mov_b32 s10, 0xffff0000")
    A(f"v_mov_b32 v3, {MISC:#x}"); A("v_lshlrev_b32 v4, 4, v1"); A("v_mov_b32 v5, 1")
    if OPT.get("ipf", "1") == "1":
        Li = lab("ip")
        A("s_cmp_lt_u32 s3, 6"); A(f"s_cbranch_scc1 {Li}")
        A("s_getpc_b64 s[60:61]")
        A("s_and_b32 s60, s60, 0xffffff00")
        A("s_lshl_b32 s62, s7, 1"); A("s_add_u32 s62, s62, s3"); A("s_sub_u32 s62, s62, 6"); A("s_lshl_b32 s62, s62, 10")
        A("v_add_u32 v6, s62, v4")
        A("v_cmp_gt_u32 vcc, CODE_BYTES, v6")
        A("s_mov_b64 exec, vcc")
        Lj = lab("ip")
        A.raw(f"s_cbranch_execz {Lj}")
        A.raw("global_load_dwordx4 v[120:123], v6, s[60:61]")
        A.label(Lj)
        A("s_mov_b64 exec, -1")
        A.label(Li)
    for r in range(4): A(f"v_mov_b32 v{96+r}, 0")
    A("s_lshr_b32 s60, s3, 1"); A(f"s_mul_i32 s60, s60, {CH_SZ}"); A("s_and_b32 s61, s3, 1"); A(f"s_mul_i32 s61, s61, {U0_OFF - U1_OFF}")
    A("s_add_u32 s60, s60, s61"); A(f"s_add_u32 s60, s60, {U1_OFF + 4096}")
    A("s_lshl_b32 s61, s3, 10"); A(f"s_add_u32 s61, s61, {MISC + M_CACC - 4096:#x}")
    A("s_cmp_lt_u32 s3, 4"); A("s_cselect_b32 s60, s60, s61")
    A("s_cmp_lt_u32 s3, 6"); A(f"s_cselect_b32 s60, s60, {MISC:#x}")
    A("s_cselect_b32 s61, 64, 16"); A("s_cmp_lt_u32 s3, 4"); A("s_cselect_b32 s61, 28, s61")
    A("v_add_u32 v14, s60, v4")
    A("v_cmp_gt_u32 vcc, s61, v1")
    A("s_mov_b64 exec, vcc")
    A.raw("ds_write_b128 v14, v[96:99]")
    A("s_mov_b64 exec, -1")
    A.wait_all(vm=False)
    A(f"v_mov_b32 v6, {SY_E:#x}")
    A("global_load_dword v127, v6, s[4:5] sc1")
    A.raw("s_barrier")
    A.stamp(0, ST)

def role_a(A):
    A("s_setprio 1")
    A("v_lshrrev_b32 v8, 3, v1")
    A("v_and_b32 v9, 7, v1")
    A("s_lshl_b32 s60, s6, 6"); A("s_lshl_b32 s61, s3, 4"); A("s_add_u32 s60, s60, s61")
    A("v_lshl_add_u32 v10, v9, 1, s60")
    A("s_lshl_b32 s61, s3, 1"); A("v_xor_b32 v11, s61, v9"); A("v_lshlrev_b32 v11, 4, v11"); A("v_lshl_add_u32 v11, v8, 10, v11")
    A("s_lshl_b32 s61, s7, 16"); A("s_lshl_b32 s62, s6, 7"); A("s_add_u32 s61, s61, s62")
    A("v_add_u32 v11, s61, v11"); A("v_add_u32 v12, 0xffffe000, v11")
    A("s_lshl_b32 s62, s3, 13"); A("s_add_u32 s63, s62, 32768"); A("s_lshl_b32 s64, s3, 10")
    A("v_lshlrev_b32 v13, 3, v10")
    srd(A, R0, P_K, 0, 0x200000)
    Lh = lab("h")
    A("s_cmp_lg_u32 s3, 3"); A(f"s_cbranch_scc1 {Lh}")
    A(f"s_mov_b32 m0, {STG_K}")
    A.raw("s_nop 0")
    A.raw(f"buffer_load_dwordx4 v12, {S(R0)}, 0 offen lds")
    A.label(Lh)
    def stage(R, base):
        A(f"s_add_u32 m0, s64, {base}"); A(f"buffer_load_dwordx4 v11, {S(R)}, s62 offen lds")
        A(f"s_add_u32 m0, s64, {base + 4096}"); return A(f"buffer_load_dwordx4 v11, {S(R)}, s63 offen lds")
    stage(R0, STG_K + 1024)
    srd(A, R2, P_V, 0, 0x200000)
    tg_kv = stage(R2, STG_V)
    srd(A, R1, P_SH, 0, 4096)
    A(f"buffer_load_dwordx4 v[44:47], v13, {S(R1)}, 0 offen")
    srd(A, R3, P_Q, 0, 0x200000)
    tg_x = stage(R3, STG_X)
    A("v_lshrrev_b32 v11, 2, v9"); A("s_lshl_b32 s61, s3, 1"); A("v_add_u32 v11, s61, v11")
    A("v_and_b32 v12, 3, v8"); A("v_lshlrev_b32 v12, 1, v12"); A("v_xor_b32 v12, v12, v11")
    A("v_add_u32 v13, 3, v8"); A("v_and_b32 v13, 3, v13"); A("v_lshlrev_b32 v13, 1, v13"); A("v_xor_b32 v13, v13, v11")
    A("v_and_b32 v11, 3, v9"); A("v_lshlrev_b32 v11, 2, v11"); A("v_lshl_add_u32 v11, v8, 10, v11"); A(f"v_add_u32 v11, {STG_K:#x}, v11")
    A("v_lshl_add_u32 v12, v12, 4, v11"); A("v_lshl_add_u32 v13, v13, 4, v11")
    A("s_lshr_b32 s68, s3, 1"); A("s_and_b32 s69, s3, 1")
    A("s_lshl_b32 s70, s6, 6"); A("s_lshl_b32 s60, s7, 1"); A("s_add_u32 s70, s70, s60"); A("s_add_u32 s70, s70, s68")
    A(f"s_mul_i32 s71, s68, {CH_SZ}")
    A(f"s_mul_i32 s72, s69, {U0_OFF - U1_OFF}"); A("s_add_u32 s72, s72, s71"); A(f"s_add_u32 s72, s72, {U1_OFF}")
    A("v_lshrrev_b32 v14, 2, v1"); A("v_lshlrev_b32 v14, 4, v14"); A("v_and_b32 v15, 3, v1"); A("v_lshl_add_u32 v14, v15, 2, v14")
    A("s_lshl_b32 s60, s69, 11"); A("s_add_u32 s60, s60, 4"); A("v_add_u32 v14, s60, v14")
    A("s_lshl_b32 s73, s70, 12")
    srd(A, R4, P_H, 0, 4096, "s73")
    A("s_lshl_b32 s61, s69, 13"); A("s_add_u32 s61, s61, s71"); A("s_add_u32 s61, s61, 256")
    for i in range(8):
        A(f"s_add_u32 m0, s61, {768*i}")
        A(f"buffer_load_dwordx4 v14, {S(R4)}, 0 offen offset:{256*i} lds")
    A("v_lshrrev_b32 v14, 4, v1"); A("v_lshlrev_b32 v14, 2, v14"); A("v_bfe_u32 v16, v1, 2, 2"); A("v_add3_u32 v14, v14, v16, v15")
    A("v_lshlrev_b32 v14, 2, v14"); A("v_add_u32 v14, -60, v14")
    A("s_mov_b32 m0, s71")
    A(f"buffer_load_dword v14, {S(R4)}, 0 offen lds")
    Lz = lab("z")
    A("s_or_b32 s61, s7, s3"); A("s_cmp_lg_u32 s61, 0"); A(f"s_cbranch_scc1 {Lz}")
    A("s_lshl_b32 s61, s6, 7"); A(f"s_add_u32 s61, s61, {SY_1B:#x}")
    A("v_lshl_add_u32 v14, v1, 10, s61"); A("v_mov_b32 v15, 0")
    A("s_mov_b64 exec, 0xffff")
    A.raw("global_store_dword v14, v15, s[4:5] sc1")
    A("s_mov_b64 exec, -1")
    A.label(Lz)
    A.stamp(1, ST)
    get_tag(A)
    A.wait_vm_tag(tg_kv)
    arrive(A, C_ST, 4, None)
    spin(A, C_ST, 4)
    A.stamp(28, ST)
    for i in range(3): A(f"ds_read_b32 v{16+i}, v13 offset:{128*(5+i)}")
    for i in range(8): A(f"ds_read_b32 v{19+i}, v12 offset:{1024 + 128*i}")
    for i in range(8): A(f"ds_read_b32 v{27+i}, v12 offset:{STG_V - STG_K + 128*i}")
    srd(A, R0, P_WS, WS_UT, 512 * UT_PITCH)
    srd(A, R1, P_WS, WS_XT, 0x200000)
    A("v_lshlrev_b32 v48, 16, v44"); A("v_lshlrev_b32 v49, 16, v46")
    A("v_and_b32 v50, s10, v44");    A("v_and_b32 v51, s10, v46")
    A("v_lshlrev_b32 v52, 16, v45"); A("v_lshlrev_b32 v53, 16, v47")
    A("v_and_b32 v54, s10, v45");    A("v_and_b32 v55, s10, v47")
    KF, UF = 56, 78
    for i in range(11): unpack(A, KF+2*i, KF+2*i+1, 16+i)
    A(f"v_mul_u32_u24 v14, {UT_PITCH}, v10")
    A("v_lshlrev_b32 v15, 4, v8"); A("v_sub_u32 v15, v14, v15")
    A("s_lshl_b32 s60, s7, 7"); A("s_sub_u32 s60, 4080, s60"); A("v_add_u32 v15, s60, v15")
    A(f"s_mov_b32 s62, {UT_PITCH}")
    for i in range(8):
        u = UF + 2*i
        A(f"v_pk_mul_f32 {vr(u,2)}, {vr(KF+2*(i+3),2)}, v[48:49]")
        for j in (1, 2, 3):
            A(f"v_pk_fma_f32 {vr(u,2)}, {vr(KF+2*(i+3-j),2)}, {vr(48+2*j,2)}, {vr(u,2)}")
    for i in range(8):
        u = UF + 2*i
        unpack(A, 94, 95, 27+i)
        A(f"v_pk_mul_f32 {vr(u,2)}, {vr(u,2)}, v[94:95]")
    for ch in range(2):
        for m in range(4):
            A(f"v_cvt_pk_bf16_f32 v{96+4*ch+m}, v{UF+2*(7-2*m)+ch}, v{UF+2*(6-2*m)+ch}")
        tg_ut = A(f"buffer_store_dwordx4 {vr(96+4*ch,4)}, v15, {S(R0)}, {'s62' if ch else '0'} offen sc1")
    Lp = lab("pad")
    A("s_cmp_lg_u32 s7, 0"); A(f"s_cbranch_scc1 {Lp}")
    for r in range(4): A(f"v_mov_b32 v{112+r}, 0")
    A("v_lshl_add_u32 v14, v8, 4, v14"); A("v_add_u32 v14, 4096, v14")
    A("s_mov_b32 exec_hi, 0")
    A.raw(f"buffer_store_dwordx4 v[112:115], v14, {S(R0)}, 0 offen sc1")
    A.raw(f"buffer_store_dwordx4 v[112:115], v14, {S(R0)}, s62 offen sc1")
    A("s_mov_b64 exec, -1")
    A.raw("s_waitcnt vmcnt(0)")
    A.label(Lp)
    A.stamp(2, ST)
    A.wait_vm_tag(tg_x)
    arrive(A, C_ST + 4, 4, None)
    spin(A, C_ST + 4, 4)
    for i in range(8): A(f"ds_read_b32 v{35+i}, v12 offset:{STG_X - STG_K + 128*i}")
    A("s_mov_b32 s64, 0x05040100"); A("s_mov_b32 s65, 0x07060302")
    for m in range(4):
        A(f"v_perm_b32 v{104+m}, v{35+2*m+1}, v{35+2*m}, s64")
        A(f"v_perm_b32 v{108+m}, v{35+2*m+1}, v{35+2*m}, s65")
    A("v_lshlrev_b32 v14, 12, v10"); A("v_lshl_add_u32 v14, v8, 4, v14")
    A("s_lshl_b32 s60, s7, 7"); A("s_add_u32 s61, s60, 4096")
    A(f"buffer_store_dwordx4 v[104:107], v14, {S(R1)}, s60 offen sc1")
    tg_xt = A(f"buffer_store_dwordx4 v[108:111], v14, {S(R1)}, s61 offen sc1")
    A("s_lshl_b32 s60, s6, 9"); A("s_lshl_b32 s61, s7, 2"); A("s_add_u32 s60, s60, s61"); A(f"s_add_u32 s60, s60, {SY_1A:#x}")
    A.wait_vm_tag(tg_ut)
    arrive(A, C_P1A, 4, lambda: gsignal(A, "s60", 128, 4))
    A.stamp(3, ST)
    A.wait_vm_tag(tg_xt)
    arrive(A, C_P1B, 9, lambda: s1b_sig(A))
    A("s_lshl_b32 s60, s69, 1"); A("v_add_u32 v8, s60, v4")
    A(f"s_mul_i32 s60, s70, {UT_PITCH}")
    srd(A, R0, P_WS, WS_UT, 4160, "s60")
    A("v_and_b32 v9, 3, v1")
    A("v_lshrrev_b32 v10, 4, v1")
    A("v_and_b32 v11, 15, v1")
    A("v_lshrrev_b32 v12, 2, v11"); A("v_add_u32 v12, v12, v10"); A("v_lshlrev_b32 v12, 6, v12"); A("v_lshl_add_u32 v12, v9, 4, v12")
    A("s_lshl_b32 s60, s69, 10"); A("s_add_u32 s60, s60, s71"); A("v_add_u32 v12, s60, v12")
    A("v_lshrrev_b32 v13, 1, v11"); A("v_lshlrev_b32 v13, 2, v13"); A("v_sub_u32 v13, v10, v13"); A("v_lshlrev_b32 v13, 4, v13")
    A("v_and_b32 v14, 1, v1"); A(f"v_mul_u32_u24 v14, {U0_OFF - U1_OFF}, v14"); A("v_sub_u32 v13, v13, v14")
    A("s_lshl_b32 s60, s69, 8"); A("s_add_u32 s60, s60, s71"); A(f"s_add_u32 s60, s60, {U0_OFF + 28*16}")
    A("v_add_u32 v13, s60, v13")
    A("s_lshl_b32 s60, s68, 2"); A("v_add_u32 v15, s60, v3")
    A("v_lshlrev_b32 v9, 7, v10"); A("v_lshl_add_u32 v9, v11, 2, v9")
    A("v_lshlrev_b32 v14, 2, v9")
    srd(A, R1, P_WS, WS_XT, 4096, "s73")
    srd(A, R2, P_WS, WS_ST1, 16384)
    srd(A, R3, P_WS, WS_MODP, 49152)
    A("v_and_b32 v96, 3, v1"); A("v_mul_u32_u24 v96, 12288, v96"); A("v_bfe_u32 v97, v1, 2, 2"); A("v_lshl_add_u32 v97, v97, 11, v96")
    A("s_lshl_b32 s74, s70, 2")
    A("s_and_b32 s60, s70, 0xfffffffe"); A("s_lshl_b32 s60, s60, 1")
    A(f"s_load_dword s75, s[{P_D}:{P_D+1}], s60")
    A("s_mov_b32 m0, s72")
    A.stamp(26, ST)
    if Asm.stamps_on: A.raw("s_waitcnt vmcnt(0)")
    A.stamp(27, ST)
    L0 = lab("w0")
    A("s_cmp_lg_u32 s3, 0"); A(f"s_cbranch_scc1 {L0}")
    st = A.snapshot()
    A("s_lshl_b32 s60, s6, 9"); A("s_and_b32 s61, s7, 3"); A("s_lshl_b32 s61, s61, 7"); A("s_add_u32 s60, s60, s61"); A(f"s_add_u32 s60, s60, {SY_1A:#x}")
    sbase(A, "s60")
    spoll(A, [(16, 16, 0), (80, 16, 64)])
    A.stampval(48, ST, "s11")
    set_flag(A, F_S1A, 1)
    A.restore(st)
    A.label(L0)
    spin(A, F_S1A, 1)
    A.stamp(4, ST)
    for i in range(4):
        tg = A(f"buffer_load_dwordx4 v8, {S(R0)}, 0 offen offset:{1024*i} sc1 lds")
    L0 = lab("w0")
    A("s_cmp_lg_u32 s3, 0"); A(f"s_cbranch_scc1 {L0}")
    st = A.snapshot()
    arrive(A, C_P1B, 9, lambda: s1b_sig(A))
    A.restore(st)
    A.label(L0)
    A.wait_vm_tag(tg)
    A.stamp(5, ST)
    arrive(A, C_FILL, 2, None, "v15")
    spin(A, C_FILL, 2, "v15")
    A.stamp(6, ST)
    ACC = 16
    FR = [128, 192]
    def rd(setb, mi, idx):
        j = idx // 2
        if idx % 2 == 0: A(f"ds_read_b128 {vr(setb+4*j,4)}, v13 offset:{3584 - 512*j + 64*mi}")
        else: A(f"ds_read_b128 {vr(setb+32+4*j,4)}, v12 offset:{2048*j + 256*mi}")
    pairs = sorted([(q, jp) for q in range(8) for jp in range(8) if q + jp <= 7], key=lambda t: (max(t), t))
    for idx in range(16): rd(FR[0], 0, idx)
    seen = set()
    XTR, STR = 48, 56
    eloads = []
    for jj in range(4):
        for rr in range(2):
            eloads.append(f"buffer_load_dword v{XTR+2*jj+rr}, v9, {S(R1)}, s76 offen offset:{512*jj+64*rr} sc1")
            eloads.append(f"buffer_load_dwordx4 {vr(STR+8*jj+4*rr,4)}, v14, {S(R2)}, s{77 + jj//2} offen offset:{2048*(jj%2)+256*rr} sc1")
    eloads.insert(0, f"buffer_load_dword v96, v97, {S(R3)}, s74 offen sc1")
    A("s_lshl_b32 s76, s69, 11"); A("s_lshl_b32 s77, s69, 13"); A("s_add_u32 s78, s77, 4096")
    for mi in range(4):
        sb = FR[mi % 2]; nb = FR[(mi + 1) % 2]
        nxt = 0
        if mi == 1:
            A.wait_all(vm=False)
            Lq = lab("q")
            A("s_cmp_lg_u32 s3, 0"); A(f"s_cbranch_scc1 {Lq}")
            cbase(A, SY_1B)
            sp_issue(A, CNT_LOADS(16))
            A.label(Lq)
        if mi == 2:
            Lq, Lr = lab("q"), lab("q")
            A("s_cmp_lg_u32 s3, 0"); A(f"s_cbranch_scc1 {Lq}")
            st = A.snapshot()
            spoll(A, CNT_LOADS(16), want=32, issued=True)
            A.stampval(50, ST, "s11")
            set_flag(A, F_S1B, 1)
            A.restore(st)
            A.label(Lq)
            spin(A, F_S1B, 1)
            A.stamp(29, ST)
        for n, (q, jp) in enumerate(pairs):
            t = q + jp
            c = vr(ACC+4*t, 4) if t in seen else "0"
            seen.add(t)
            A(f"v_mfma_f32_16x16x32_bf16 {vr(ACC+4*t,4)}, {vr(sb+4*jp,4)}, {vr(sb+32+4*q,4)}, {c}")
            if mi < 3 and n >= 2 and n % 2 == 0 and nxt < 16:
                rd(nb, mi + 1, nxt); nxt += 1
            if mi in (2, 3) and n % 3 == 1 and eloads:
                A(eloads.pop(0))
        assert mi == 3 or nxt == 16
    assert not eloads
    arrive(A, C_EL, 4, None)
    A.stamp(7, ST)
    A("s_lshl_b32 s60, s3, 12"); A(f"s_add_u32 s60, s60, {EX_OFF}"); A("v_add_u32 v12, s60, v4")
    A("s_xor_b32 s60, s3, 1"); A("s_lshl_b32 s60, s60, 12"); A(f"s_add_u32 s60, s60, {EX_OFF}"); A("v_add_u32 v13, s60, v4")
    A("s_sub_u32 s60, s71, s76"); A(f"s_add_u32 s60, s60, {U1_OFF + 4092 - 1600}"); A("v_sub_u32 v8, s60, v9")
    UR = 88
    for jj in range(4):
        for rr in range(2):
            A(f"ds_read_b32 v{UR+2*jj+rr}, v8 offset:{1600 - 512*jj - 64*rr}")
    A.raw("s_nop 3")
    L1, L2 = lab("x"), lab("x")
    A("s_cmp_eq_u32 s69, 0"); A(f"s_cbranch_scc0 {L1}")
    for t in range(4): A.raw(f"ds_write_b128 v12, {vr(ACC+16+4*t,4)} offset:{1024*t}")
    A.raw(f"s_branch {L2}")
    A.label(L1)
    for t in range(4): A.raw(f"ds_write_b128 v12, {vr(ACC+4*t,4)} offset:{1024*t}")
    for r in range(16): A.raw(f"v_mov_b32 v{ACC+r}, v{ACC+16+r}")
    A.label(L2)
    A.raw("s_waitcnt lgkmcnt(0)"); A.lgq = []
    arrive(A, C_EX, 2, None, "v15")
    A(f"v_add_f32_dpp v96, v96, v96 quad_perm:[1,0,3,2] {DPP}")
    A(f"v_add_f32_dpp v96, v96, v96 quad_perm:[2,3,0,1] {DPP}")
    bfround(A, 96)
    A("v_add_f32 v97, 1.0, v96"); bfround(A, 97)
    A("v_readlane_b32 s60, v96, 0"); A("v_readlane_b32 s61, v97, 4"); A("v_readlane_b32 s62, v96, 8")
    A("s_lshl_b32 s63, s75, 16"); A("s_and_b32 s75, s75, s10"); A("s_cmp_eq_u32 s68, 0"); A("s_cselect_b32 s75, s63, s75")
    A("v_mov_b32 v98, s61"); A("v_mov_b32 v99, s60"); A("v_mov_b32 v100, s75"); A("v_mov_b32 v101, s62")
    A("s_lshl_b32 s60, s70, 6")
    srd(A, R0, P_WS, WS_X1B, 0x200000 - 511 * 64, "s60")
    A("v_lshlrev_b32 v9, 16, v10"); A("v_lshl_add_u32 v9, v11, 2, v9")
    A("s_lshl_b32 s76, s69, 20")
    for jj in range(4):
        for rr in range(2):
            k = 2*jj + rr; st = STR + 4*k; x = 128 + 4*k
            unpack(A, x, x+1, XTR+k)
            A(f"v_fma_f32 v{x+2}, v{x}, v{st}, v{st+1}")
            A(f"v_fma_f32 v{x+3}, v{x+1}, v{st+2}, v{st+3}")
            A(f"v_pk_fma_f32 {vr(x+2,2)}, {vr(x+2,2)}, v[98:99], v[98:99] op_sel:[0,0,1] op_sel_hi:[1,0,1]")
            A(f"v_and_b32 v{st}, s10, v{UR+k}"); A(f"v_lshlrev_b32 v{st+1}, 16, v{UR+k}")
            A(f"v_pk_fma_f32 {vr(ACC+2*k,2)}, {vr(st,2)}, v[100:101], {vr(ACC+2*k,2)} op_sel:[0,0,0] op_sel_hi:[1,0,1]")
    spin(A, C_EX, 2, "v15")
    A.stamp(8, ST)
    for t in range(4): A(f"ds_read_b128 {vr(112+4*t,4)}, v13 offset:{1024*t}")
    for jj in range(4):
        for rr in range(2):
            k = 2*jj + rr; x = 128 + 4*k; a = ACC + 2*k
            A(f"v_pk_add_f32 {vr(a,2)}, {vr(a,2)}, {vr(112+2*k,2)}")
            A(f"v_pk_mul_f32 {vr(a,2)}, {vr(a,2)}, {vr(x+2,2)}")
            A(f"v_pk_fma_f32 {vr(a,2)}, {vr(a,2)}, v[100:101], {vr(x,2)} op_sel:[0,1,0] op_sel_hi:[1,1,1]")
            A(f"v_cvt_pk_bf16_f32 v{XTR+k}, v{a}, v{a+1}")
            A(f"s_add_u32 s60, s76, {(8*jj+rr)*32768}")
            tg = A(f"buffer_store_dword v{XTR+k}, v9, {S(R0)}, s60 offen sc1")
    A.stamp(9, ST)
    A.wait_vm_tag(tg)
    arrive(A, C_S2, 8, lambda: (gcount(A, SY_2), A.wait_all(lg=False), set_flag(A, F_GO, 1)))
    A("s_setprio 0")
    A.stamp(10, ST)
    A.raw("s_branch L_main")

def role_b(A):
    A("s_sub_u32 s68, s3, 4")
    Lz = lab("z")
    A("s_cmp_lg_u32 s3, 4"); A(f"s_cbranch_scc1 {Lz}")
    A("s_cmp_ge_u32 s2, 2"); A(f"s_cbranch_scc1 {Lz}")
    A("s_lshl_b32 s60, s2, 13"); A(f"s_add_u32 s60, s60, {SY_2:#x}")
    A("v_lshl_add_u32 v8, v1, 7, s60"); A("v_mov_b32 v9, 0")
    A.raw("global_store_dword v8, v9, s[4:5] sc1")
    A.label(Lz)
    A("s_lshl_b32 s60, s6, 5"); A("s_add_u32 s60, s60, s7"); A("s_lshl_b32 s60, s60, 3"); A("s_lshl_b32 s61, s68, 1"); A("s_add_u32 s69, s60, s61")
    A("v_lshrrev_b32 v8, 5, v1"); A("v_and_b32 v9, 31, v1"); A("v_lshlrev_b32 v10, 10, v8"); A("v_lshl_add_u32 v10, v9, 4, v10")
    A("s_lshl_b32 s60, s69, 10")
    srd(A, R0, P_Q, 0, 0x200000)
    A(f"buffer_load_dwordx4 v[16:19], v10, {S(R0)}, s60 offen")
    A(f"buffer_load_dwordx4 v[20:23], v10, {S(R0)}, s60 offen offset:512")
    A("s_and_b32 s70, s2, 3"); A("s_lshr_b32 s71, s2, 2")
    A("s_lshl_b32 s60, s70, 7"); A("s_lshl_b32 s61, s68, 5"); A("s_add_u32 s60, s60, s61")
    A("v_lshrrev_b32 v11, 3, v1"); A("v_add_u32 v11, s60, v11")
    A("v_mul_u32_u24 v12, 6144, v11"); A("v_and_b32 v13, 7, v1"); A("v_lshl_add_u32 v12, v13, 4, v12")
    A("v_lshlrev_b32 v11, 1, v11")
    A("s_cmp_lt_u32 s2, 192"); A("s_cselect_b32 s62, 0x300000, 0"); A("s_cselect_b32 s72, 0xc000, 0")
    srd(A, R1, P_WM, 0, "s62")
    srd(A, R2, P_C, 0, 1024)
    A("s_lshl_b32 s60, s71, 7")
    for i in range(4):
        A(f"buffer_load_dwordx4 {vr(24+4*i,4)}, v12, {S(R1)}, s60 offen")
        if i < 3: A("s_add_u32 s60, s60, 49152")
    for i in range(4): A(f"buffer_load_ushort v{40+i}, v11, {S(R2)}, 0 offen offset:{16*i}")
    A("s_lshr_b32 s73, s68, 1"); A("s_and_b32 s74, s68, 1")
    A("s_lshl_b32 s75, s8, 1"); A("s_add_u32 s75, s75, s74")
    A("s_cmp_eq_u32 s73, 0"); A(f"s_cselect_b32 s60, s{P_WG}, s{P_WU}"); A(f"s_cselect_b32 s61, s{P_WG+1}, s{P_WU+1}")
    srd(A, R4, 60, 0, 1792 * 1024)
    A("s_mul_i32 s80, s75, 57344"); A("s_mul_i32 s61, s9, 224"); A("s_add_u32 s80, s80, s61")
    WR, DR = 48, 64
    A("v_lshlrev_b32 v15, 2, v1")
    for i in range(16):
        A(f"buffer_load_dword v{WR+i}, v15, {S(R4)}, s80 offen offset:{3584*(i%2)}")
        if i % 2 == 1: A("s_add_u32 s80, s80, 7168")
    A("s_cmp_lt_u32 s2, 224"); A("s_cselect_b32 s62, 0x1c0000, 0")
    srd(A, R3, P_WD, 0, "s62")
    A("s_lshl_b32 s60, s68, 8"); A("s_lshl_b32 s61, s2, 13"); A("s_add_u32 s60, s60, s61"); A("s_add_u32 s61, s60, 4096")
    for i in range(8):
        A(f"buffer_load_dword v{DR+i}, v15, {S(R3)}, {'s61' if i >= 4 else 's60'} offen offset:{1024*(i%4)}")
    srd(A, R3, P_WS, WS_WDP, "s62")
    for r in range(4): A(f"v_mov_b32 v{44+r}, 0")
    A.stamp(1, ST)
    get_tag(A)
    A("s_mov_b32 s63, 0x3f803f80")
    for i in range(8):
        A(f"v_dot2c_f32_bf16 v{44 + (i & 1)}, s63, v{16+i}")
        A(f"v_dot2c_f32_bf16 v{46 + (i & 1)}, v{16+i}, v{16+i}")
    A("v_add_f32 v44, v44, v45"); A("v_add_f32 v46, v46, v47")
    for m in ("quad_perm:[1,0,3,2] " + DPP, "quad_perm:[2,3,0,1] " + DPP, "row_half_mirror " + DPP, "row_mirror " + DPP, "row_bcast:15 row_mask:0xa bank_mask:0xf"):
        A(f"v_add_f32_dpp v44, v44, v44 {m}"); A(f"v_add_f32_dpp v46, v46, v46 {m}")
    A("v_mul_f32 v44, 0x3b000000, v44"); A("v_mul_f32 v46, 0x3b000000, v46")
    A("v_fma_f32 v46, -v44, v44, v46"); A("v_max_f32 v46, 0, v46"); A("v_add_f32 v46, 0x3727c5ac, v46")
    A("v_rsq_f32 v46, v46")
    srd(A, R0, P_WS, WS_ST1, 16384)
    A("v_lshlrev_b32 v8, 3, v8"); A("s_lshl_b32 s60, s69, 3")
    A("v_mul_f32 v47, v44, v46"); A("v_sub_f32 v47, 0, v47")
    A("s_mov_b32 exec_lo, 0x10000"); A("s_mov_b32 exec_hi, 0x10000")
    A(f"buffer_store_dwordx2 v[46:47], v8, {S(R0)}, s60 offen sc1")
    A("s_mov_b64 exec, -1")
    A("v_lshlrev_b32 v8, 2, v1")
    for t in range(4):
        c = 40 + t
        A(f"v_lshlrev_b32 v{c}, 16, v{c}")
        A(f"v_mul_f32 v72, 0xbfb8aa3b, v{c}"); A("v_exp_f32 v72, v72"); A("v_add_f32 v72, 1.0, v72"); A("v_rcp_f32 v72, v72")
        A(f"v_mul_f32 v{c}, v{c}, v72"); bfround(A, c)
    for t in range(4):
        for j in range(4):
            w = 24 + 4*t + j
            unpack(A, 88, 89, w)
            if t == 0: A(f"v_pk_mul_f32 {vr(80+2*j,2)}, v[88:89], v[40:41] op_sel:[0,0] op_sel_hi:[1,0]")
            else:
                sel = t & 1
                A(f"v_pk_fma_f32 {vr(80+2*j,2)}, v[88:89], {vr(40+(t&~1),2)}, {vr(80+2*j,2)} op_sel:[0,{sel},0] op_sel_hi:[1,{sel},1]")
    for j in range(8): A(f"v_add_f32_dpp v{80+j}, v{80+j}, v{80+j} row_ror:8 {DPP}")
    A("v_lshrrev_b32 v9, 4, v1"); A("s_lshl_b32 s61, s68, 2"); A("v_add_u32 v9, s61, v9"); A("v_lshlrev_b32 v9, 8, v9"); A("v_lshl_add_u32 v9, v13, 5, v9")
    A(f"v_add_u32 v9, {MISC + M_MODL:#x}, v9")
    A("s_mov_b32 exec_lo, 0x00ff00ff"); A("s_mov_b32 exec_hi, 0x00ff00ff")
    A("ds_write_b128 v9, v[80:83]"); A("ds_write_b128 v9, v[84:87] offset:16")
    A("s_mov_b64 exec, -1")
    srd(A, R1, P_WS, WS_MODP, "s72")
    def mod_final():
        A(f"v_lshl_add_u32 v9, v1, 2, v3")
        for p in range(16): A(f"ds_read_b32 v{96+p}, v9 offset:{M_MODL + 256*p}")
        for st in (8, 4, 2, 1):
            for p in range(st): A(f"v_add_f32 v{96+p}, v{96+p}, v{96+p+st}")
        A("s_mul_i32 s61, s70, 12288"); A("s_lshl_b32 s62, s71, 8"); A("s_add_u32 s61, s61, s62")
        A(f"buffer_store_dword v96, v8, {S(R1)}, s61 offen sc1")
        Lm = lab("m")
        A("s_sub_u32 s61, s71, 24"); A("s_cmp_ge_u32 s61, 16"); A(f"s_cbranch_scc1 {Lm}")
        A("s_lshl_b32 s61, s61, 9"); A("s_lshl_b32 s60, s70, 2"); A("s_add_u32 s60, s60, s61"); A(f"s_add_u32 s60, s60, {SY_1M:#x}")
        A.wait_all(lg=False)
        gsignal(A, "s60", 128, 4)
        A.label(Lm)
    arrive(A, C_MOD, 4, mod_final)
    A.stamp(2, ST)
    A.raw("s_waitcnt vmcnt(0)"); A.vmq = []
    arrive(A, C_P1B, 9, lambda: s1b_sig(A))
    A.stamp(3, ST)
    A("v_lshrrev_b32 v11, 3, v1"); A("s_lshl_b32 s60, s73, 4"); A("v_add_u32 v12, s60, v13")
    A("v_lshl_add_u32 v14, v11, 5, v12"); A("v_lshl_add_u32 v14, v14, 3, v3")
    A("v_lshlrev_b32 v12, 4, v12"); A("v_lshl_add_u32 v12, v11, 15, v12")
    A("v_and_b32 v11, 3, v1"); A("v_mul_u32_u24 v11, 12288, v11"); A("v_and_b32 v15, 60, v1"); A("v_add_u32 v11, v11, v15")
    A("s_lshl_b32 s77, s75, 6"); A("s_add_u32 s78, s77, 8192"); A("s_add_u32 s77, s77, 6144")
    srd(A, R1, P_WS, WS_MODP, 49152)
    A("s_mul_i32 s60, s9, 7*32768")
    srd(A, R0, P_WS, WS_WP, 7 * 32768, "s60")
    A("s_lshl_b32 s79, s75, 10")
    for i in range(16): unpack(A, 96+2*i, 97+2*i, WR+i)
    A("s_mov_b32 s60, 0x05040100"); A("s_mov_b32 s61, 0x07060302")
    for m in range(4):
        A(f"v_perm_b32 v{72+m}, v{DR+2*m+1}, v{DR+2*m}, s60")
        A(f"v_perm_b32 v{76+m}, v{DR+2*m+1}, v{DR+2*m}, s61")
    A("v_lshrrev_b32 v10, 5, v1"); A("v_mul_u32_u24 v10, 229376, v10"); A("v_bfe_u32 v15, v1, 3, 2"); A("v_lshl_add_u32 v10, v15, 10, v10"); A("v_lshl_add_u32 v10, v13, 4, v10")
    A("s_mul_i32 s64, s68, 458752"); A("s_lshl_b32 s60, s71, 12"); A("s_add_u32 s64, s64, s60"); A("s_lshl_b32 s60, s70, 8"); A("s_add_u32 s64, s64, s60")
    A.stamp(27, ST)
    Lw = lab("w7")
    A("s_cmp_lg_u32 s3, 7"); A(f"s_cbranch_scc1 {Lw}")
    st = A.snapshot()
    A("s_lshr_b32 s60, s8, 1"); A("s_lshl_b32 s60, s60, 9"); A("s_and_b32 s61, s9, 3"); A("s_lshl_b32 s61, s61, 7"); A("s_add_u32 s60, s60, s61"); A(f"s_add_u32 s60, s60, {SY_1M:#x}")
    sbase(A, "s60")
    spoll(A, [(84, 4, 0), (88, 4, 4096)])
    A.stampval(48, ST, "s11")
    set_flag(A, F_S1M, 1)
    A.restore(st)
    A.label(Lw)
    spin(A, F_S1M, 1)
    A.stamp(5, ST)
    A("s_setprio 2")
    A(f"buffer_load_dword v80, v11, {S(R1)}, s78 offen sc1")
    A(f"buffer_load_dword v81, v11, {S(R1)}, s77 offen sc1")
    for m in ("quad_perm:[1,0,3,2]", "quad_perm:[2,3,0,1]"):
        A(f"v_add_f32_dpp v80, v80, v80 {m} {DPP}"); A(f"v_add_f32_dpp v81, v81, v81 {m} {DPP}")
    bfround(A, 80); bfround(A, 81)
    A("v_add_f32 v80, 1.0, v80"); bfround(A, 80)
    A("s_mov_b32 s65, s79")
    for i in range(16): A(f"v_readlane_b32 s{68+i}, v80, {4*i}")
    for hf in range(2):
        P0, P1 = 48 + 8*hf, 52 + 8*hf
        for m in range(4):
            for e in range(2):
                i = 8*hf + 2*m + e; w = 96 + 2*i; sel = i & 1
                A(f"v_mul_f32 v{88+2*e}, s{68+i}, v{w}"); A(f"v_mul_f32 v{89+2*e}, s{68+i}, v{w+1}")
            A(f"v_cvt_pk_bf16_f32 v{P0+m}, v88, v90")
            A(f"v_cvt_pk_bf16_f32 v{P1+m}, v89, v91")
        A(f"buffer_store_dwordx4 {vr(P0,4)}, v12, {S(R0)}, s65 offen offset:{512*hf} sc1")
        tg = A(f"buffer_store_dwordx4 {vr(P1,4)}, v12, {S(R0)}, s65 offen offset:{512*hf+128} sc1")
    A.stamp(7, ST)
    for i in range(16): A(f"v_readlane_b32 s{84+i}, v81, {4*i}")
    for r in range(82, 88): A(f"v_mov_b32 v{r}, 0")
    for hf in range(2):
        for m in range(4):
            unpack(A, 88, 89, 48+8*hf+m); unpack(A, 90, 91, 52+8*hf+m)
            for r in range(4): A(f"v_add_f32 v{84+r}, v{84+r}, v{88+r}")
            for e in range(2):
                i = 8*hf + 2*m + e
                A(f"v_fmac_f32 v82, s{84+i}, v{96+2*i}"); A(f"v_fmac_f32 v83, s{84+i}, v{97+2*i}")
    A("v_add_f32 v84, v84, v85"); A("v_add_f32 v86, v86, v87")
    A(f"ds_add_f32 v14, v84 offset:{M_CACC}"); A(f"ds_add_f32 v14, v82 offset:{M_CACC+4}")
    A(f"ds_add_f32 v14, v86 offset:{M_CACC+64}"); A(f"ds_add_f32 v14, v83 offset:{M_CACC+68}")
    A.stamp(6, ST)
    A("s_lshl_b32 s60, s9, 4"); A("s_add_u32 s60, s60, s8"); A("s_mul_i32 s60, s60, 1792")
    srd(A, R2, P_WS, WS_CP, 1792, "s60")
    A("s_lshl_b32 s60, s9, 9"); A("s_lshl_b32 s61, s8, 2"); A("s_add_u32 s60, s60, s61"); A(f"s_add_u32 s60, s60, {SY_1P:#x}")
    A.wait_vm_tag(tg)
    def cp_final():
        gsignal(A, "s60", 128, 4)
        A("v_add_u32 v9, v3, v4")
        A(f"ds_read_b128 v[88:91], v9 offset:{M_CACC}"); A(f"ds_read_b128 v[92:95], v9 offset:{M_CACC+1024}")
        A(f"buffer_store_dwordx4 v[88:91], v4, {S(R2)}, 0 offen sc1")
        A(f"buffer_store_dwordx4 v[92:95], v4, {S(R2)}, 0 offen offset:1024 sc1")
    arrive(A, C_P, 4, cp_final)
    A.stamp(8, ST)
    A("s_setprio 0")
    A(f"buffer_store_dwordx4 v[72:75], v10, {S(R3)}, s64 offen sc1")
    A(f"buffer_store_dwordx4 v[76:79], v10, {S(R3)}, s64 offen offset:128 sc1")
    A.wait_all(lg=False)
    arrive(A, C_S2, 8, lambda: (gcount(A, SY_2), A.wait_all(lg=False), set_flag(A, F_GO, 1)))
    A.stamp(10, ST)
    A("s_cmp_eq_u32 s3, 7"); A("s_cbranch_scc1 L_help")

K1C, K3C = 0xc0135761, 0xbdd2d3e8
def p4_consts(A):
    A("s_lshr_b32 s70, s9, 2"); A("s_and_b32 s70, s70, 1")
    A("s_and_b32 s71, s9, 3"); A("s_lshr_b32 s60, s9, 3"); A("s_lshl_b32 s60, s60, 2"); A("s_add_u32 s71, s71, s60")
    A("s_mul_i32 s60, s71, 229376"); A("s_mul_i32 s61, s3, 28672"); A("s_add_u32 s60, s60, s61")
    srd(A, R4, P_WS, WS_WDP, 28672, "s60")
    for i in range(1, 7): A(f"s_mov_b32 s{80+i}, {4096*i}")
def wd_load(A, idx):
    so = f"s{80 + idx//4}" if idx >= 4 else "0"
    return A(f"buffer_load_dwordx4 {vr(128+4*idx,4)}, v4, {S(R4)}, {so} offen offset:{1024*(idx%4)} sc1")

def p3_main(A):
    A.label("L_main")
    A.vmq = []; A.lgq = []
    W = 128
    A("s_mul_i32 s68, s9, 7"); A("s_add_u32 s68, s68, s3")
    A("s_lshl_b32 s60, s68, 15")
    srd(A, R0, P_WS, WS_WP, 32768, "s60")
    p4_consts(A)
    A("s_mov_b32 s87, 28672")
    A("s_cmp_ge_u32 s3, 4"); A("s_cselect_b32 s73, 1, 0")
    A("s_cselect_b32 s60, 4, 0"); A("s_cselect_b32 s74, 4, 1"); A("v_add_u32 v8, s60, v3")
    assert C_EL == F_GO + 4
    spin(A, F_S1P, 1)
    spin(A, F_GO, "s74", "v8")
    A.stamp(11, ST)
    def wload(kk, raw=False):
        so = f"s{80 + kk//4}" if kk >= 4 else "0"
        t = f"buffer_load_dwordx4 {vr(W+4*kk,4)}, v4, {S(R0)}, {so} offen offset:{1024*(kk%4)} sc1"
        A.raw(t) if raw else A(t)
    NW0 = int(OPT.get("nw0", 16))
    for kk in range(NW0): wload(kk)
    Lw = lab("wl")
    A("s_cmp_eq_u32 s73, 0"); A(f"s_cbranch_scc1 {Lw}")
    for kk in range(NW0, 32): wload(kk, True)
    A.label(Lw)
    A("s_mul_i32 s60, s9, 16*1792"); A("s_lshl_b32 s61, s3, 8"); A("s_add_u32 s60, s60, s61")
    srd(A, R1, P_WS, WS_CP, 16*1792, "s60")
    A("v_and_b32 v8, 31, v1"); A("v_lshrrev_b32 v9, 5, v1")
    A("v_mul_u32_u24 v10, 8*1792, v9"); A("v_lshl_add_u32 v10, v8, 3, v10")
    A("v_bfe_u32 v11, v1, 2, 2"); A("v_lshl_add_u32 v12, v9, 3, v11"); A("v_lshlrev_b32 v12, 6, v12")
    A("v_and_b32 v13, 16, v1"); A("v_lshl_add_u32 v12, v13, 1, v12")
    A("v_and_b32 v13, 3, v1"); A("v_lshl_add_u32 v12, v13, 3, v12")
    A("v_lshl_add_u32 v14, v8, 4, v3")
    A("v_bfe_u32 v15, v1, 4, 1"); A("v_mul_u32_u24 v15, 57344, v15"); A("v_lshl_add_u32 v15, v9, 8, v15")
    A("v_and_b32 v9, 15, v1"); A("v_lshl_add_u32 v15, v9, 4, v15")
    A("s_mul_i32 s69, s8, 8*57344"); A("s_lshr_b32 s60, s68, 1"); A("s_lshl_b32 s60, s60, 10"); A("s_add_u32 s69, s69, s60")
    A("s_and_b32 s60, s68, 1"); A("s_lshl_b32 s60, s60, 9"); A("s_add_u32 s69, s69, s60")
    srd(A, R2, P_WS, WS_ACT, 128 * 57344)
    A("v_bfe_u32 v108, v1, 4, 1"); A("v_lshl_add_u32 v108, v108, 2, v11"); A("v_lshlrev_b32 v108, 1, v108")
    A("v_lshrrev_b32 v109, 5, v1"); A("v_add_u32 v108, v108, v109"); A("v_lshlrev_b32 v108, 6, v108"); A("v_lshl_add_u32 v108, v13, 3, v108")
    A("s_lshl_b32 s60, s71, 12"); A("s_and_b32 s61, s3, 3"); A("s_lshl_b32 s61, s61, 10"); A("s_add_u32 s60, s60, s61")
    A("s_lshl_b32 s61, s70, 5"); A("s_add_u32 s60, s60, s61"); A("v_add_u32 v108, s60, v108")
    A("v_lshrrev_b32 v109, 4, v1"); A("s_and_b32 s61, s3, 3"); A("s_lshl_b32 s61, s61, 2"); A("v_add_u32 v109, s61, v109")
    A("v_xor_b32 v109, v109, v9"); A("v_lshlrev_b32 v109, 4, v109"); A("v_lshl_add_u32 v109, v9, 8, v109"); A(f"v_add_u32 v109, {RES_OFF:#x}, v109")
    A("s_lshl_b32 s72, s8, 11"); A("s_lshl_b32 s60, s9, 2"); A("s_add_u32 s72, s72, s60"); A(f"s_add_u32 s72, s72, {SY_3:#x}")
    ACC, XR, NR, PF = 16, 32, 8, 4
    def rdx(j, kk):
        f = XR + 4 * (kk % NR); off = (j % 2) * 32768 + kk * 1024
        A(f"ds_read_b64_tr_b16 {vr(f,2)}, v12 offset:{off}")
        A(f"ds_read_b64_tr_b16 {vr(f+2,2)}, v12 offset:{off+256}")
    def prio(n_a, n_b=None):
        A(f"s_setprio {n_a}")
    A.stamp(12, ST)
    A.barrier()
    A.stamp(13, ST)
    Lp, Lp2 = lab("pr"), lab("pr")
    A("s_cmp_eq_u32 s73, 0"); A(f"s_cbranch_scc1 {Lp}"); A("s_setprio 2"); A.raw(f"s_branch {Lp2}")
    A.label(Lp)
    for _ in range(3): A.raw("s_barrier")
    for kk in range(NW0, 32): wload(kk, True)
    A("s_setprio 1")
    A.label(Lp2)
    for kk in range(NW0, 32): A.mark_vm(range(W+4*kk, W+4*kk+4))
    for q in range(8):
        A(f"buffer_load_dwordx2 {vr(64+2*q,2)}, v10, {S(R1)}, 0 offen offset:{1792*(q%2)} sc1")
        if q % 2 == 1 and q < 7: A("v_add_u32 v10, 3584, v10")
    for kk in range(PF): rdx(0, kk)
    tg_act = None
    wd_next = 0
    for j in range(4):
        for kk in range(32):
            if j == 0 and kk + PF in (8, 16, 24):
                Lb = lab("bb")
                A("s_cmp_eq_u32 s73, 0"); A(f"s_cbranch_scc1 {Lb}"); A.raw("s_barrier"); A.label(Lb)
            A(f"v_mfma_f32_32x32x16_bf16 {vr(ACC,16)}, {vr(W+4*kk,4)}, {vr(XR+4*(kk%NR),4)}, {vr(ACC,16) if kk else '0'}")
            if kk + PF < 32: rdx(j, kk + PF)
            if kk == 5: A("s_setprio 2")
            if j > 0 and kk == 14:
                A(f"s_add_u32 s60, s72, {128*(j-1)}")
                A.wait_vm_tag(tg_act)
                arrive(A, C_ACT + 4*(j-1), 7, lambda: gsignal(A, "s60", 512, 4))
            if kk == 20:
                if j == 2: A("v_add_u32 v108, 0x10000, v108")
                A(f"ds_read_b64_tr_b16 v[110:111], v108 offset:{(j%2)*32768}")
            if kk == 24:
                unpack(A, 112, 113, 110); unpack(A, 114, 115, 111)
                A(f"ds_write_b128 v109, v[112:115] offset:{4096*j}")
            if j == 0 and kk == 26:
                for q in (8, 4, 2):
                    for i in range(q): A(f"v_add_f32 v{64+i}, v{64+i}, v{64+i+q}")
                A("v_cvt_pk_bf16_f32 v66, v64, v65")
                unpack(A, 68, 69, 66)
                A("v_sub_f32 v64, v64, v68"); A("v_sub_f32 v65, v65, v69")
                A("v_cvt_pk_bf16_f32 v67, v64, v65")
                A("s_mov_b32 s60, 0x01000100"); A("s_mov_b32 s61, 0x07060100"); A("s_mov_b32 s62, 0x07060302")
                A("v_perm_b32 v80, v66, v66, s60"); A("v_perm_b32 v81, v66, v67, s61"); A("v_perm_b32 v82, v67, v66, s62"); A("v_mov_b32 v83, 0")
            if j == 3 and kk >= 1 and kk % 2 == 1:
                wd_load(A, wd_next); wd_next += 1
        if j < 3: A.stamp(14 + j, ST)
        spin(A, F_ST, j + 1)
        A(f"ds_read_b128 v[84:87], v14 offset:{M_BF + 512*j}")
        A(f"ds_read_b128 v[88:91], v14 offset:{M_CN + 512*j}")
        A(f"v_mfma_f32_32x32x16_bf16 {vr(ACC,16)}, v[80:83], v[84:87], {vr(ACC,16)}")
        A("s_setprio 3")
        if j < 3:
            if j == 1: A("v_add_u32 v12, 0x10000, v12")
            for kk in range(PF): rdx(j + 1, kk)
        else:
            for _ in range(4):
                wd_load(A, wd_next); wd_next += 1
        for q in range(2):
            G = ACC + 4*q; U = G + 8; T = 92
            for i in range(4): A(f"v_mul_f32 v{T+i}, v{G+i}, v{G+i}")
            for i in range(4): A(f"v_fma_f32 v{T+i}, v{T+i}, v89, v88")
            for i in range(4): A(f"v_mul_f32 v{T+i}, v{T+i}, v{G+i}")
            for i in range(4):
                A(f"v_exp_f32 v{T+i}, v{T+i}"); A(f"v_mul_f32 v{U+i}, v{U+i}, v{G+i}")
            for i in range(4): A(f"v_fma_f32 v{T+i}, v{T+i}, v90, v90")
            for i in range(4): A(f"v_rcp_f32 v{T+i}, v{T+i}")
            for i in range(4): A(f"v_mul_f32 v{U+i}, v{U+i}, v{T+i}")
        for m in range(4):
            A(f"v_cvt_pk_bf16_f32 v{104+m}, v{ACC+8+m}, v{ACC+12+m}")
        tg_act = A(f"buffer_store_dwordx4 v[104:107], v15, {S(R2)}, s69 offen sc1")
        if j < 3:
            A(f"s_add_u32 s69, s69, {2*57344}")
            A("s_setprio 1")
    A.stamp(17, ST)
    while wd_next < 28:
        wd_load(A, wd_next); wd_next += 1
    A(f"s_add_u32 s60, s72, {128*3}")
    A.wait_vm_tag(tg_act)
    arrive(A, C_ACT + 12, 7, lambda: gsignal(A, "s60", 512, 4))
    A.stamp(18, ST)
    A.raw("s_branch L_p4")
    return A.snapshot()

def p3_help(A):
    A.label("L_help")
    A.vmq = []; A.lgq = []
    A("s_setprio 3")
    p4_consts(A)
    srd(A, R1, P_WS, WS_MODP, 49152)
    A("v_lshlrev_b32 v8, 2, v1"); A("s_lshl_b32 s60, s71, 8"); A(f"s_add_u32 s60, s60, {2560*4}")
    for p in range(4):
        A(f"buffer_load_dword v{64+p}, v8, {S(R1)}, s60 offen sc1")
        if p < 3: A("s_add_u32 s60, s60, 12288")
    A("s_lshl_b32 s60, s9, 9"); A("s_and_b32 s61, s8, 3"); A("s_lshl_b32 s61, s61, 7"); A("s_add_u32 s60, s60, s61"); A(f"s_add_u32 s60, s60, {SY_1P:#x}")
    sbase(A, "s60")
    spoll(A, [(16, 16, 0)])
    set_flag(A, F_S1P, 1)
    A.stamp(11, ST)
    A("v_add_f32 v64, v64, v65"); A("v_add_f32 v66, v66, v67"); A("v_add_f32 v64, v64, v66"); bfround(A, 64)
    A("v_add_u32 v8, v8, v3")
    A(f"ds_write_b32 v8, v64 offset:{M_GB}")
    A("s_lshl_b32 s60, s8, 17")
    srd(A, R0, P_WS, WS_X1B, 131072, "s60")
    A("v_lshrrev_b32 v9, 5, v1"); A("v_bfe_u32 v11, v1, 2, 2"); A("v_lshl_add_u32 v12, v9, 3, v11"); A("v_lshlrev_b32 v12, 6, v12")
    A("v_and_b32 v13, 16, v1"); A("v_lshl_add_u32 v12, v13, 1, v12")
    A("v_and_b32 v13, 3, v1"); A("v_lshl_add_u32 v12, v13, 3, v12")
    A("v_cmp_eq_u32 s[74:75], 1, v13"); A("v_cmp_eq_u32 s[76:77], 2, v13"); A("v_cmp_eq_u32 s[78:79], 3, v13")
    A("v_and_b32 v14, 31, v1"); A("v_lshl_add_u32 v14, v14, 4, v3")
    A("v_mov_b32 v100, 0x3f803f80"); A("v_mov_b32 v101, 0x3f803f80")
    cpoll(A, SY_2)
    A.stampval(49, ST, "s11")
    A.stamp(12, ST)
    tags = {}
    def epoch():
        Le = lab("ep")
        A("s_cmp_lg_u32 s2, 0"); A(f"s_cbranch_scc1 {Le}")
        A(f"v_mov_b32 v7, {SY_E:#x}"); A("v_mov_b32 v6, s100")
        A("s_mov_b64 exec, 1")
        A.raw("global_store_dword v7, v6, s[4:5] sc1")
        A("s_mov_b64 exec, -1")
        A.label(Le)
    def dma(i):
        if i % 4 == 0:
            A(f"s_mov_b32 m0, {1024*i:#x}"); A(f"s_mov_b32 s60, {1024*i:#x}")
        tags[i] = A(f"buffer_load_dwordx4 v4, {S(R0)}, s60 offen offset:{1024*(i%4)} sc1 lds")
    for i in range(56): dma(i)
    A.wait_vm_tag(tags[7]); A.raw("s_barrier")
    A.stamp(13, ST)
    for i in range(56, 64): dma(i)
    XR, NB = 32, 7
    def freg(kk):
        i = kk % 14
        return 32 + 4*i if i < 8 else 102 + 4*(i - 8)
    def rdx(j, kk):
        f = freg(kk); off = (j % 2) * 32768 + kk * 1024
        A(f"ds_read_b64_tr_b16 {vr(f,2)}, v12 offset:{off}")
        A(f"ds_read_b64_tr_b16 {vr(f+2,2)}, v12 offset:{off+256}")
    batches = [range(0, 7), range(7, 14), range(14, 21), range(21, 28), range(28, 32)]
    for j in range(4):
        if j == 2: A("v_add_u32 v12, 0x10000, v12")
        if j > 0: A("s_setprio 1")
        for kk in batches[0]: rdx(j, kk)
        for bi, bt in enumerate(batches):
            if j == 0 and bi < 3:
                A.wait_vm_tag(tags[8*bi + 15]); A.raw("s_barrier")
            A.wait_all(vm=False)
            if bi + 1 < len(batches):
                for kk in batches[bi + 1]: rdx(j, kk)
            for kk in bt:
                f = freg(kk)
                c = (lambda r: vr(r, 4)) if kk else (lambda r: "0")
                A(f"v_mfma_f32_4x4x4_16b_bf16 v[16:19], {vr(f,2)}, {vr(f,2)}, {c(16)}")
                A(f"v_mfma_f32_4x4x4_16b_bf16 v[20:23], v[100:101], {vr(f,2)}, {c(20)}")
                A(f"v_mfma_f32_4x4x4_16b_bf16 v[24:27], {vr(f+2,2)}, {vr(f+2,2)}, {c(24)}")
                A(f"v_mfma_f32_4x4x4_16b_bf16 v[28:31], v[100:101], {vr(f+2,2)}, {c(28)}")
                if j > 0 and kk == 3: A("s_setprio 2")
        A("s_setprio 3")
        A("s_mov_b32 s61, 0x05040100"); A("s_mov_b32 s62, 0x07060302")
        for r in range(4): A(f"v_add_f32 v{16+r}, v{16+r}, v{24+r}")
        A("v_add_f32 v64, v20, v28")
        A("v_cndmask_b32 v65, v16, v17, s[74:75]"); A("v_cndmask_b32 v65, v65, v18, s[76:77]"); A("v_cndmask_b32 v65, v65, v19, s[78:79]")
        A("v_mov_b32 v66, v64"); A("v_mov_b32 v67, v65")
        A("v_permlane32_swap_b32 v64, v66"); A("v_permlane32_swap_b32 v65, v67")
        A("v_add_f32 v64, v64, v66"); A("v_add_f32 v65, v65, v67")
        a, B = 64, 68
        A(f"v_mul_f32 v{a}, 0xbb000000, v{a}"); A(f"v_mul_f32 v{a+1}, 0x3b000000, v{a+1}")
        A(f"v_fma_f32 v{a+1}, -v{a}, v{a}, v{a+1}"); A(f"v_max_f32 v{a+1}, 0, v{a+1}")
        A(f"v_add_f32 v{B+6}, 0x3727c5ac, v{a+1}")
        A(f"v_rsq_f32 v{B+8}, v{B+6}"); A(f"v_sqrt_f32 v{a+1}, v{B+6}")
        A(f"v_mul_f32 v{B+4}, {K1C:#x}, v{B+8}"); A(f"v_mul_f32 v{B+9}, v{B+8}, v{B+8}"); A(f"v_mul_f32 v{B+9}, v{B+9}, v{B+8}")
        A(f"v_mul_f32 v{B+5}, {K3C:#x}, v{B+9}"); A(f"v_mov_b32 v{B+7}, 0")
        A(f"v_cvt_pk_bf16_f32 v{B+10}, v{a}, v{a+1}")
        unpack(A, B+12, B+13, B+10)
        A(f"v_sub_f32 v{a}, v{a}, v{B+12}"); A(f"v_sub_f32 v{a+1}, v{a+1}, v{B+13}")
        A(f"v_cvt_pk_bf16_f32 v{B+11}, v{a}, v{a+1}")
        A(f"v_perm_b32 v{B}, v{B+11}, v{B+10}, s61"); A(f"v_mov_b32 v{B+1}, v{B+10}"); A(f"v_perm_b32 v{B+2}, v{B+10}, v{B+11}, s62"); A(f"v_mov_b32 v{B+3}, 0")
        A(f"ds_write_b128 v14, {vr(B,4)} offset:{M_BF + 512*j}")
        A(f"ds_write_b128 v14, {vr(B+4,4)} offset:{M_CN + 512*j}")
        if j < 3: A.wait_vm_tag(tags[32*(j+1) + 31])
        set_flag(A, F_ST, j + 1)
        A.stamp(14 + j, ST)
        if j < 2:
            for i in range(64 + 32*j, 96 + 32*j): dma(i)
        if j == 2:
            for i in range(28): wd_load(A, i)
    A("s_setprio 0")
    epoch()
    A("s_lshl_b32 s60, s8, 11"); A("s_and_b32 s61, s9, 3"); A("s_lshl_b32 s61, s61, 9"); A("s_add_u32 s60, s60, s61"); A(f"s_add_u32 s60, s60, {SY_3:#x}")
    A("s_mov_b32 s75, s60")
    sbase(A, "s75")
    spoll(A, [(16, 16, 0)]); spoll(A, [(16, 16, 128)])
    set_flag(A, F_S3, 2)
    spoll(A, [(16, 16, 256)])
    set_flag(A, F_S3, 3)
    A._wait(vm=8)
    A.stamp(18, ST)

def p4(A, st_main):
    A.label("L_p4")
    A.restore(st_main)
    A.lgq = []
    A("s_setprio 0")
    A("s_lshl_b32 s60, s8, 3"); A("s_add_u32 s60, s60, s70"); A("s_mul_i32 s60, s60, 57344"); A("s_mul_i32 s61, s3, 7168"); A("s_add_u32 s60, s60, s61")
    srd(A, R0, P_WS, WS_ACT, 7 * 57344, "s60")
    def act_loads(p):
        for k in range(7):
            if k % 4 == 0: A(f"s_mov_b32 s60, {p*2*57344 + k*1024}")
            A(f"buffer_load_dwordx4 {vr(16+28*p+4*k,4)}, v4, {S(R0)}, s60 offen offset:{1024*(k%4)} sc1")
    spin(A, F_S3, 2)
    act_loads(0); act_loads(1)
    A("v_and_b32 v8, 15, v1"); A("v_lshrrev_b32 v11, 4, v1"); A("v_xor_b32 v11, v11, v8")
    A("v_lshlrev_b32 v11, 4, v11"); A("v_lshl_add_u32 v11, v8, 8, v11"); A("s_lshl_b32 s60, s3, 12"); A("v_add_u32 v11, s60, v11")
    A("s_and_b32 s73, s3, 3")
    A("v_bfe_u32 v12, v1, 3, 2"); A("s_lshl_b32 s60, s73, 2"); A("v_add_u32 v12, s60, v12")
    A("v_and_b32 v13, 6, v1"); A("v_lshlrev_b32 v13, 1, v13"); A("v_and_b32 v14, 1, v1"); A("v_add_u32 v13, v13, v14")
    A("v_lshrrev_b32 v15, 5, v1"); A("v_lshl_add_u32 v13, v15, 1, v13")
    A("v_xor_b32 v13, v13, v12"); A("v_lshlrev_b32 v13, 4, v13"); A("v_lshl_add_u32 v13, v12, 8, v13")
    A("v_and_b32 v14, 7, v1")
    A("v_lshlrev_b32 v12, 10, v12"); A("v_lshl_add_u32 v12, v14, 4, v12"); A("v_lshl_add_u32 v12, v15, 3, v12")
    A("v_lshlrev_b32 v14, 5, v14"); A("v_lshl_add_u32 v14, v15, 2, v14"); A("v_add_u32 v14, v14, v3")
    A("s_lshl_b32 s74, s8, 17"); A("s_lshl_b32 s60, s70, 14"); A("s_add_u32 s74, s74, s60"); A("s_lshl_b32 s60, s71, 7"); A("s_add_u32 s74, s74, s60")
    srd(A, R1, P_OUT, 0, 0x200000)
    spin(A, F_S3, 3)
    act_loads(2)
    A.stamp(19, ST)
    ACC = 240
    for p in range(4):
        for k in range(7):
            for dt in range(4):
                A(f"v_mfma_f32_16x16x32_bf16 {vr(ACC+4*dt,4)}, {vr(128+16*k+4*dt,4)}, {vr(16+28*p+4*k,4)}, {vr(ACC+4*dt,4) if k else '0'}")
        if p == 2: A("v_add_u32 v11, 0x10000, v11")
        for dt in range(4):
            if dt: A(f"v_xor_b32 v8, {64*dt}, v11")
            A(f"ds_write_b128 {'v8' if dt else 'v11'}, {vr(ACC+4*dt,4)} offset:{(p%2)*32768}")
        if p == 2:
            Lw = lab("p3")
            A("s_cmp_lg_u32 s3, 7"); A(f"s_cbranch_scc1 {Lw}")
            st = A.snapshot()
            sbase(A, "s75")
            spoll(A, [(16, 16, 384)])
            A.stamp(22, ST)
            A.restore(st)
            A.label(Lw)
        A.barrier()
        if p == 2: act_loads(3)
        if p in (0, 2): A.stamp(20 + p//2, ST)
        if p == 3: A.stamp(23, ST)
        Lr = lab("rd")
        A("s_cmp_lt_u32 s3, 4"); A(f"s_cbranch_scc{'0' if p % 2 == 0 else '1'} {Lr}")
        st = A.snapshot()
        T = 16
        A(f"v_add_u32 v8, {p*32768:#x}, v13"); A(f"v_add_u32 v15, {RES_OFF + p*4096:#x}, v13")
        for w in range(5): A(f"ds_read_b128 {vr(T+4*w,4)}, v8 offset:{4096*w}")
        A(f"ds_read2_b32 v[36:37], v14 offset0:{M_GB//4} offset1:{M_GB//4+2}")
        A(f"ds_read2_b32 v[38:39], v14 offset0:{M_GB//4+4} offset1:{M_GB//4+6}")
        A("ds_read_b128 v[40:43], v15")
        for w in (1, 2, 3):
            A(f"v_pk_add_f32 {vr(T,2)}, {vr(T,2)}, {vr(T+4*w,2)}"); A(f"v_pk_add_f32 {vr(T+2,2)}, {vr(T+2,2)}, {vr(T+4*w+2,2)}")
            A(f"ds_read_b128 {vr(T+4*w,4)}, v8 offset:{4096*(w+4)}")
        for w in (4, 1, 2, 3):
            A(f"v_pk_add_f32 {vr(T,2)}, {vr(T,2)}, {vr(T+4*w,2)}"); A(f"v_pk_add_f32 {vr(T+2,2)}, {vr(T+2,2)}, {vr(T+4*w+2,2)}")
        A(f"v_pk_fma_f32 {vr(T,2)}, {vr(T,2)}, v[36:37], v[40:41]"); A(f"v_pk_fma_f32 {vr(T+2,2)}, {vr(T+2,2)}, v[38:39], v[42:43]")
        A(f"v_permlane32_swap_b32 v{T}, v{T+2}"); A(f"v_permlane32_swap_b32 v{T+1}, v{T+3}")
        A(f"v_cvt_pk_bf16_f32 v{T+4}, v{T}, v{T+2}"); A(f"v_cvt_pk_bf16_f32 v{T+5}, v{T+1}, v{T+3}")
        A(f"s_add_u32 s60, s74, {p*32768}")
        A(f"buffer_store_dwordx2 {vr(T+4,2)}, v12, {S(R1)}, s60 offen")
        A.restore(st)
        A.label(Lr)
    A.stamp(24, ST)
    if Asm.stamps_on: A.raw("s_waitcnt vmcnt(0)")
    A.stamp(25, ST)
    A.stamp_flush(ST, 6, 4, 0, "s3")

def kernel():
    A = Asm()
    prologue(A)
    A("s_cmp_ge_u32 s3, 4"); A("s_cbranch_scc1 L_b")
    st0 = A.snapshot()
    role_a(A)
    A.label("L_b")
    A.restore(st0)
    role_b(A)
    stm = p3_main(A)
    p3_help(A)
    p4(A, stm)
    A.label("L_end")
    A.raw("s_endpgm")
    return A.finish()

def build(path):
    ref = open("cdna_kernels/%s.s.ref" % NAME).read()
    head = [l for l in ref.splitlines() if l.startswith(";") and "@launch" not in l]
    nm = NAME + "_kernel"
    out = list(head)
    out.append(f"; @launch grid=(256,1,1) block=(512,1,1) lds={LDS_SIZE}")
    out.append('.amdgcn_target "amdgcn-amd-amdhsa--gfx950"')
    body = kernel()
    nins = sum(1 for l in body.splitlines() if l.startswith("    "))
    body = body.replace("CODE_BYTES", "L_end-%s-16" % nm)
    txt = "\n".join(out) + f"\n.text\n.globl {nm}\n.p2align 8\n.type {nm},@function\n{nm}:\n{body}\n" + f""".section .rodata,"a"
.p2align 6
.amdhsa_kernel {nm}
  .amdhsa_next_free_vgpr 256
  .amdhsa_next_free_sgpr 102
  .amdhsa_accum_offset 256
  .amdhsa_group_segment_fixed_size 0
  .amdhsa_kernarg_size 120
  .amdhsa_user_sgpr_count 2
  .amdhsa_user_sgpr_kernarg_segment_ptr 1
  .amdhsa_system_sgpr_workgroup_id_x 1
  .amdhsa_float_denorm_mode_32 3
.end_amdhsa_kernel
"""
    open(path, "w").write(txt)

def check_ws(wsb, R, rep, bf, torch, np):
    g = lambda off, n, dt=np.uint16: wsb[off:off + n].view(dt)
    f32 = lambda off, n: torch.from_numpy(g(off, n, np.float32).copy())
    print("epoch", hex(int(g(SY_E, 4, np.uint32)[0])), "1A", hex(int(g(SY_1A, 4, np.uint32)[0])))
    mod = f32(WS_MODP, 49152).reshape(4, 3072).sum(0).bfloat16().float()
    mod[512:1024] = (mod[512:1024] + 1).bfloat16().float(); mod[2048:2560] = (mod[2048:2560] + 1).bfloat16().float()
    rep("mod", mod, R["mod1"])
    ut = bf(g(WS_UT, 512 * UT_PITCH)).reshape(512, UT_PITCH // 2)
    rep("ut", ut[:, :2048].flip(1).T, R["u"]); print("ut pad", ut[:, 2048:2080].abs().max().item())
    xt = bf(g(WS_XT, 0x200000)).reshape(512, 2048); rep("xt", xt.T, R["x"])
    st = f32(WS_ST1, 16384).reshape(2048, 2); rep("xn", R["x"] * st[:, :1] + st[:, 1:], R["xn"])
    x1 = bf(g(WS_X1B, 0x200000)).reshape(64, 512, 32).permute(0, 2, 1).reshape(2048, 512); rep("x1", x1, R["x1"])
    wp = bf(g(WS_WP, 112 * 32768)).reshape(112, 32, 2, 32, 8)
    rho = torch.arange(32); fl = 2 * (rho % 8) + (rho // 8) % 2; mt = rho // 16
    cb1 = R["mod1"][2048:2560]; sb = R["mod1"][1536:2048]
    W2 = torch.stack([R["wg"], R["wu"]])
    Wsel = W2[mt[None, :], :, (16 * torch.arange(112)[:, None] + fl[None, :])]
    wexp = (Wsel * cb1).bfloat16().float()
    rep("wp", wp.permute(0, 3, 1, 2, 4).reshape(112, 32, 512), wexp)
    cp = f32(WS_CP, 256 * 1792).reshape(16, 16, 224, 2).sum(1).reshape(112, 32, 2)
    rep("c1", cp[..., 0], wexp.sum(-1)); rep("c2", cp[..., 1], (Wsel * sb).sum(-1))
    wdp = bf(g(WS_WDP, 8 * 229376)).reshape(8, 56, 4, 4, 16, 8)
    i = torch.arange(16); dl = 2 * (i % 8) + i // 8
    wd = R["wd"].reshape(56, 4, 8, 8, 4, 16)[..., dl]
    rep("wdp", wdp.permute(1, 3, 5, 0, 2, 4), wd)
    act = bf(g(WS_ACT, 128 * 57344)).reshape(128, 56, 4, 16, 8)
    rep("act", act.permute(0, 3, 1, 2, 4).reshape(2048, 1792), R["act"])

if __name__ == "__main__":
    p = sys.argv[1] if len(sys.argv) > 1 else "cdna_kernels/%s.s" % NAME
    if "stamp" in p:
        Asm.stamps_on = True; Asm.clock_ids = (0, 13, 17, 25)
    build(p)
    print("written", p, "ws end", hex(WS_END), "lds", LDS_SIZE)
```
